```python
import torch

def _softmax(x, axis=-1):
    return torch.softmax(x, dim=axis)
def _gelu(x):
    return torch.nn.functional.gelu(x, approximate="tanh")
def _silu(x):
    return torch.nn.functional.silu(x)
def _sigmoid(x):
    return torch.sigmoid(x)
def _layernorm(x, axis=-1, eps=1e-5):
    m = x.mean(dim=axis, keepdim=True)
    v = x.var(dim=axis, keepdim=True, unbiased=False)
    return (x - m) / torch.sqrt(v + eps)
def _scatter_add(tgt, idx, src, axis=0):
    return tgt.clone().index_add_(axis, idx, src)
def _segment_sum(src, seg, n):
    out = torch.zeros((n,) + src.shape[1:], dtype=src.dtype)
    return out.index_add_(0, seg, src)
def _pad(x, pw):
    flat = tuple(v for pair in reversed(pw) for v in pair)
    return torch.nn.functional.pad(x, flat)

kernel_name = 'concat_heads__softmax_full_mha__linear_kernel_hedgehog__prompt'

def setup_inputs():

    _w = (lambda a: (lambda t: t.to(torch.bfloat16) if t.is_floating_point() else t)(torch.as_tensor(a)))
    def _A_setup():
        B, S, D = 1, 2048, 1024
        return {
            "x": _w((lambda *s: torch.randn(*s, dtype=torch.bfloat16) * 0.2)(B, S, D)),
            "wqkv": _w((lambda *s: torch.randn(*s, dtype=torch.bfloat16) * 0.2)(D, 3 * D)),
            "wo": _w((lambda *s: torch.randn(*s, dtype=torch.bfloat16) * 0.05)(D, D)),
        }
    _A_in = _A_setup()

    def _B_setup():
        B, S, D, H = 1, 2048, 1024, 32
        Dh = D // H
        return {
            "x": _w((lambda *s: torch.randn(*s, dtype=torch.bfloat16) * 0.4)(B, S, D)),
            "wqkv": _w((lambda *s: torch.randn(*s, dtype=torch.bfloat16) * 0.4)(D, 3 * D)),
            "w_phi": _w((lambda *s: torch.randn(*s, dtype=torch.bfloat16) * 0.4)(H, Dh, Dh) * (Dh ** -0.5)),
            "wo": _w((lambda *s: torch.randn(*s, dtype=torch.bfloat16) * 0.05)(D, D)),
        }
    _B_in = _B_setup()

    return {
        "A_x": _A_in["x"],
        "A_wqkv": _A_in["wqkv"],
        "A_wo": _A_in["wo"],
        "B_x": _B_in["x"],
        "B_wqkv": _B_in["wqkv"],
        "B_w_phi": _B_in["w_phi"],
        "B_wo": _B_in["wo"],
    }

def reference(A_x, A_wqkv, A_wo, B_x, B_wqkv, B_w_phi, B_wo):
    def _A_ref(x, wqkv, wo):
        B, S, D = x.shape
        H = 32; Dh = D // H
        qkv = (lambda x, *d: x.permute(*d))((x @ wqkv).reshape(B, S, 3, H, Dh), 2, 0, 3, 1, 4)
        q, k, v = qkv[0], qkv[1], qkv[2]
        scale = Dh ** -0.5
        scores = torch.einsum("bhqd,bhkd->bhqk", q, k) * scale
        p = _softmax(scores, axis=-1)
        o = torch.einsum("bhqk,bhkd->bhqd", p, v)
        return (lambda x, *d: x.permute(*d))(o, 0, 2, 1, 3).reshape(B, S, D) @ wo

    def _B_ref(x, wqkv, w_phi, wo):
        B, S, D = x.shape
        H = 32; Dh = D // H
        qkv = (lambda x, *d: x.permute(*d))((x @ wqkv).reshape(B, S, 3, H, Dh), 2, 0, 3, 1, 4)
        q, k, v = qkv[0], qkv[1], qkv[2]
        pq = torch.einsum("bhsd,hdf->bhsf", q, w_phi)
        pk = torch.einsum("bhsd,hdf->bhsf", k, w_phi)
        phi_q = torch.concatenate([_softmax(pq, axis=-1), _softmax(-pq, axis=-1)], axis=-1)
        phi_k = torch.concatenate([_softmax(pk, axis=-1), _softmax(-pk, axis=-1)], axis=-1)
        kv = torch.einsum("bhsf,bhsd->bhfd", phi_k, v)
        z  = torch.einsum("bhsf->bhf", phi_k)
        num = torch.einsum("bhqf,bhfd->bhqd", phi_q, kv)
        den = torch.einsum("bhqf,bhf->bhq", phi_q, z)[..., None] + 1e-6
        o = num / den
        return (lambda x, *d: x.permute(*d))(o, 0, 2, 1, 3).reshape(B, S, D) @ wo

    a = _A_ref(A_x, A_wqkv, A_wo)
    b = _B_ref(B_x, B_wqkv, B_w_phi, B_wo)
    return torch.concatenate([a, b], axis=-1)
```

```python
import sys, math

NAME = "concat_heads__softmax_full_mha__linear_kernel_hedgehog__prompt"

QA_OFF = 0
KVA_OFF = 4 << 20
QB_OFF = 12 << 20
KVP_OFF = 16 << 20
ZP_OFF = 18 << 20
O_OFF = 20 << 20
WS_USED = 28 << 20

LOG2E = 1.4426950408889634
QSCALE = (32 ** -0.5) * LOG2E


def f32hex(x):
    import struct
    return "0x%08x" % struct.unpack("<I", struct.pack("<f", x))[0]


class Asm:
    def __init__(self):
        self.lines = []

    def __call__(self, s):
        self.lines.append("    " + s)

    def label(self, l):
        self.lines.append(l + ":")

    def c(self, s):
        self.lines.append("    ; " + s)

    def raw(self, s):
        self.lines.append(s)

    def text(self):
        return "\n".join(self.lines) + "\n"


def vr(a, n=1):
    return f"v{a}" if n == 1 else f"v[{a}:{a+n-1}]"


def sr(a, n=1):
    return f"s{a}" if n == 1 else f"s[{a}:{a+n-1}]"


def kernel_begin(a, name):
    a.raw(".text")
    a.raw(f".globl {name}")
    a.raw(".p2align 8")
    a.raw(f".type {name},@function")
    a.label(name)


def kernel_desc(a, name, nvgpr, nsgpr=100):
    nv = (nvgpr + 3) // 4 * 4
    a.raw('.section .rodata,"a"')
    a.raw(".p2align 6")
    a.raw(f".amdhsa_kernel {name}")
    a.raw(f"  .amdhsa_next_free_vgpr {nv}")
    a.raw(f"  .amdhsa_next_free_sgpr {nsgpr}")
    a.raw(f"  .amdhsa_accum_offset {nv}")
    a.raw("  .amdhsa_group_segment_fixed_size 0")
    a.raw("  .amdhsa_kernarg_size 80")
    a.raw("  .amdhsa_user_sgpr_count 2")
    a.raw("  .amdhsa_user_sgpr_kernarg_segment_ptr 1")
    a.raw("  .amdhsa_system_sgpr_workgroup_id_x 1")
    a.raw(".end_amdhsa_kernel")


def srd(a, d, base_lo, base_hi, nbytes):
    a(f"s_mov_b32 s{d}, s{base_lo}")
    a(f"s_mov_b32 s{d+1}, s{base_hi}")
    a(f"s_mov_b32 s{d+2}, {nbytes}")
    a(f"s_mov_b32 s{d+3}, 0x00020000")


import os
STAMP = int(os.environ.get("STAMP", "0"))
STAMP_OFF = 64 << 20
S_ST = 72


def stamp(a, i, real=False):
    if STAMP:
        a(f"{'s_memrealtime' if real else 's_memtime'} s[{S_ST+2*i}:{S_ST+2*i+1}]")


def stamp_store(a, sWave, kidx, vtmp):
    if not STAMP:
        return
    a("s_load_dwordx2 s[92:93], s[0:1], 72")
    a("s_waitcnt lgkmcnt(0)")
    a(f"s_add_u32 s92, s92, {STAMP_OFF + kidx*(1<<20)}")
    a("s_addc_u32 s93, s93, 0")
    a("s_mov_b32 s94, 0x100000")
    a("s_mov_b32 s95, 0x00020000")
    a("s_lshl_b32 s96, s2, 4")
    a(f"s_add_u32 s96, s96, s{sWave}")
    a("s_lshl_b32 s96, s96, 5")
    for i in range(8):
        a(f"v_mov_b32 v{vtmp+i}, s{S_ST+2*i}")
    a(f"v_mov_b32 v{vtmp+8}, 0")
    a("s_mov_b64 exec, 1")
    a(f"buffer_store_dwordx4 {vr(vtmp,4)}, v{vtmp+8}, s[92:95], s96 offen")
    a(f"buffer_store_dwordx4 {vr(vtmp+4,4)}, v{vtmp+8}, s[92:95], s96 offen offset:16")
    a("s_mov_b64 exec, -1")


def mfma32(a, d, x, y, c):
    cs = "0" if c is None else vr(c, 16)
    a(f"v_mfma_f32_32x32x16_bf16 {vr(d,16)}, {vr(x,4)}, {vr(y,4)}, {cs}")


def mfma16(a, d, x, y, c):
    cs = "0" if c is None else vr(c, 4)
    a(f"v_mfma_f32_16x16x32_bf16 {vr(d,4)}, {vr(x,4)}, {vr(y,4)}, {cs}")


K1_XB = 0
K1_WB = 98304
K1_PHI = 159744
K1_LDS = 163840


def softmax_pm(a, S, E, T, pk_out):
    mx, mn, t0, t1, sp, sn, cmx, cmn = [T + i for i in range(8)]
    a(f"v_max3_f32 v{mx}, v{S}, v{S+1}, v{S+2}")
    a(f"v_min3_f32 v{mn}, v{S}, v{S+1}, v{S+2}")
    for i in range(3, 15, 2):
        a(f"v_max3_f32 v{mx}, v{mx}, v{S+i}, v{S+i+1}")
        a(f"v_min3_f32 v{mn}, v{mn}, v{S+i}, v{S+i+1}")
    a(f"v_max_f32 v{mx}, v{mx}, v{S+15}")
    a(f"v_min_f32 v{mn}, v{mn}, v{S+15}")
    a(f"v_mov_b32 v{t0}, v{mx}")
    a(f"v_mov_b32 v{t1}, v{mn}")
    a("s_nop 1")
    a(f"v_permlane32_swap_b32 v{mx}, v{t0}")
    a(f"v_permlane32_swap_b32 v{mn}, v{t1}")
    a("s_nop 1")
    a(f"v_max_f32 v{mx}, v{mx}, v{t0}")
    a(f"v_min_f32 v{mn}, v{mn}, v{t1}")
    a(f"v_mul_f32 v{cmx}, s{S_NLOG2E}, v{mx}")
    a(f"v_mul_f32 v{cmn}, s{S_LOG2E}, v{mn}")
    for i in range(16):
        a(f"v_fma_f32 v{E+i}, v{S+i}, s{S_LOG2E}, v{cmx}")
        a(f"v_fma_f32 v{E+16+i}, v{S+i}, s{S_NLOG2E}, v{cmn}")
    for i in range(32):
        a(f"v_exp_f32 v{E+i}, v{E+i}")
    a("s_nop 0")
    a(f"v_add_f32 v{sp}, v{E}, v{E+1}")
    a(f"v_add_f32 v{sn}, v{E+16}, v{E+17}")
    for i in range(2, 16):
        a(f"v_add_f32 v{sp}, v{sp}, v{E+i}")
        a(f"v_add_f32 v{sn}, v{sn}, v{E+16+i}")
    a(f"v_mov_b32 v{t0}, v{sp}")
    a(f"v_mov_b32 v{t1}, v{sn}")
    a("s_nop 1")
    a(f"v_permlane32_swap_b32 v{sp}, v{t0}")
    a(f"v_permlane32_swap_b32 v{sn}, v{t1}")
    a("s_nop 1")
    a(f"v_add_f32 v{sp}, v{sp}, v{t0}")
    a(f"v_add_f32 v{sn}, v{sn}, v{t1}")
    a(f"v_rcp_f32 v{sp}, v{sp}")
    a(f"v_rcp_f32 v{sn}, v{sn}")
    a("s_nop 0")
    for i in range(16):
        a(f"v_mul_f32 v{E+i}, v{E+i}, v{sp}")
        a(f"v_mul_f32 v{E+16+i}, v{E+16+i}, v{sn}")
    for i in range(16):
        a(f"v_cvt_pk_bf16_f32 v{pk_out+i}, v{E+2*i}, v{E+2*i+1}")


S_LOG2E = 90
S_NLOG2E = 91


def gen_k1(a):
    name = "k1_qkv_kernel"
    kernel_begin(a, name)
    SX, SW, SWS, SPHI = 4, 8, 12, 16
    sProb, sMblk, sHp, sWave, sWm, sWn = 20, 21, 22, 23, 24, 25
    sI = 26
    sXo = [28, 29, 30, 31]
    sXr, sXw = 32, 33
    sWr, sWp1, sWp2 = 34, 35, 36
    sWoO, sWoE1, sWoE2 = 37, 38, 39
    sWlO, sWlE1, sWlE2 = 40, 41, 42
    sE1sel = 43
    sT0, sT1, sT2, sT3 = 44, 45, 46, 47
    sPtr = 48
    vLane = 1
    vXd, vWd = 2, 3
    vXb, vWb = 4, 5
    vXr = [6, 7, 8, 9]
    vWr = 10
    vT = 11
    ACC = 16
    FR = 112
    VEND = 152

    def acc(s, tt): return ACC + (s * 2 + tt) * 16
    def xf(st, tt): return FR + st * 20 + tt * 4
    def wf(st, s): return FR + st * 20 + 8 + s * 4

    a("s_cmp_ge_u32 s2, 256")
    a("s_cbranch_scc1 K1_END")
    a(f"s_load_dwordx4 s[{sPtr}:{sPtr+3}], s[0:1], 0")
    a(f"s_load_dwordx4 s[{sPtr+4}:{sPtr+7}], s[0:1], 24")
    a(f"s_load_dwordx2 s[{sPtr+8}:{sPtr+9}], s[0:1], 40")
    a(f"s_load_dwordx2 s[{sPtr+10}:{sPtr+11}], s[0:1], 72")
    if STAMP:
        for i in range(16):
            a(f"s_mov_b32 s{S_ST+i}, 0")
    stamp(a, 0); stamp(a, 6, True)
    a(f"v_and_b32 v{vLane}, 63, v0")
    a(f"v_lshrrev_b32 v{vT}, 6, v0")
    a(f"s_and_b32 s{sT0}, s2, 7")
    a(f"s_lshr_b32 s{sT1}, s2, 3")
    a(f"v_readfirstlane_b32 s{sWave}, v{vT}")
    a(f"s_lshr_b32 s{sProb}, s{sT0}, 2")
    a(f"s_bfe_u32 s{sT2}, s{sT0}, 0x10001")
    a(f"s_lshl_b32 s{sT2}, s{sT2}, 2")
    a(f"s_and_b32 s{sT3}, s{sT1}, 3")
    a(f"s_add_u32 s{sMblk}, s{sT2}, s{sT3}")
    a(f"s_and_b32 s{sT2}, s{sT0}, 1")
    a(f"s_lshl_b32 s{sT2}, s{sT2}, 3")
    a(f"s_lshr_b32 s{sT3}, s{sT1}, 2")
    a(f"s_add_u32 s{sHp}, s{sT2}, s{sT3}")
    if os.environ.get("SAMETILE"):
        a(f"s_mov_b32 s{sMblk}, 0")
        a(f"s_mov_b32 s{sHp}, 0")
    a(f"s_and_b32 s{sWm}, s{sWave}, 3")
    a(f"s_lshr_b32 s{sWn}, s{sWave}, 2")
    a(f"v_lshrrev_b32 v{vT}, 3, v{vLane}")
    a(f"s_lshl_b32 s{sT0}, s{sWave}, 3")
    a(f"v_add_u32 v{vT+1}, s{sT0}, v{vT}")
    a(f"v_bfe_u32 v{vT+2}, v{vT+1}, 1, 3")
    a(f"v_and_b32 v{vT+3}, 7, v{vLane}")
    a(f"v_xor_b32 v{vT+2}, v{vT+2}, v{vT+3}")
    a(f"v_lshlrev_b32 v{vT+2}, 4, v{vT+2}")
    a(f"v_lshl_add_u32 v{vXd}, v{vT+1}, 11, v{vT+2}")
    a(f"v_bfe_u32 v{vT+2}, v{vT}, 1, 1")
    a(f"v_lshlrev_b32 v{vT+2}, 2, v{vT+2}")
    a(f"v_xor_b32 v{vT+2}, v{vT+2}, v{vT+3}")
    a(f"v_lshlrev_b32 v{vT+2}, 4, v{vT+2}")
    a(f"v_mul_u32_u24 v{vWd}, 6144, v{vT}")
    a(f"v_add_u32 v{vWd}, v{vWd}, v{vT+2}")
    a(f"v_and_b32 v{vT}, 31, v{vLane}")
    a(f"v_lshrrev_b32 v{vT+1}, 5, v{vLane}")
    a(f"v_bfe_u32 v{vT+2}, v{vT}, 1, 3")
    a(f"v_xor_b32 v{vT+2}, v{vT+2}, v{vT+1}")
    a(f"v_lshlrev_b32 v{vT+2}, 4, v{vT+2}")
    a(f"v_lshl_add_u32 v{vXb}, v{vT}, 7, v{vT+2}")
    a(f"s_lshl_b32 s{sT0}, s{sWm}, 13")
    a(f"v_add_u32 v{vXb}, s{sT0}, v{vXb}")
    a(f"v_bfe_u32 v{vT}, v{vLane}, 2, 2")
    a(f"v_lshl_add_u32 v{vT+2}, v{vT+1}, 3, v{vT}")
    a(f"v_lshlrev_b32 v{vWb}, 7, v{vT+2}")
    a(f"v_bfe_u32 v{vT+2}, v{vLane}, 4, 1")
    a(f"v_lshlrev_b32 v{vT+2}, 1, v{vT+2}")
    a(f"v_bfe_u32 v{vT+3}, v{vLane}, 1, 1")
    a(f"v_add_u32 v{vT+2}, v{vT+2}, v{vT+3}")
    a(f"s_lshl_b32 s{sT0}, s{sWn}, 2")
    a(f"v_add_u32 v{vT+2}, s{sT0}, v{vT+2}")
    a(f"v_lshrrev_b32 v{vT+3}, 1, v{vT}")
    a(f"v_lshlrev_b32 v{vT+3}, 2, v{vT+3}")
    a(f"v_xor_b32 v{vT+2}, v{vT+2}, v{vT+3}")
    a(f"v_lshl_add_u32 v{vWb}, v{vT+2}, 4, v{vWb}")
    a(f"v_and_b32 v{vT+2}, 1, v{vLane}")
    a(f"v_lshl_add_u32 v{vWb}, v{vT+2}, 3, v{vWb}")
    a(f"v_add_u32 v{vWb}, {K1_WB}, v{vWb}")
    a("s_waitcnt lgkmcnt(0)")
    a(f"s_cmp_eq_u32 s{sProb}, 0")
    a(f"s_cselect_b32 s{sT0}, s{sPtr}, s{sPtr+4}")
    a(f"s_cselect_b32 s{sT1}, s{sPtr+1}, s{sPtr+5}")
    a(f"s_cselect_b32 s{sT2}, s{sPtr+2}, s{sPtr+6}")
    a(f"s_cselect_b32 s{sT3}, s{sPtr+3}, s{sPtr+7}")
    a(f"s_lshl_b32 s{sI}, s{sMblk}, 19")
    a(f"s_add_u32 s{sT0}, s{sT0}, s{sI}")
    a(f"s_addc_u32 s{sT1}, s{sT1}, 0")
    srd(a, SX, sT0, sT1, 524288)
    srd(a, SW, sT2, sT3, 6291456)
    srd(a, SWS, sPtr + 10, sPtr + 11, WS_USED)
    srd(a, SPHI, sPtr + 8, sPtr + 9, 65536)
    def wpiece(dst_so, dst_l, p_sgpr):
        a(f"s_and_b32 s{sT0}, s{p_sgpr}, 3")
        a(f"s_mul_i32 s{sT0}, s{sT0}, 49152")
        a(f"s_lshr_b32 s{sT1}, s{p_sgpr}, 2")
        a(f"s_lshl_b32 s{sT1}, s{sT1}, 11")
        a(f"s_add_u32 s{sT0}, s{sT0}, s{sT1}")
        a(f"s_lshl_b32 s{sT1}, s{sHp}, 7")
        a(f"s_add_u32 s{dst_so}, s{sT0}, s{sT1}")
        a(f"s_lshl_b32 s{dst_l}, s{p_sgpr}, 10")
        a(f"s_add_u32 s{dst_l}, s{dst_l}, {K1_WB}")
    wpiece(sWoO, sWlO, sWave)
    a(f"s_add_u32 s{sT2}, s{sWave}, 4")
    wpiece(sWoE2, sWlE2, sT2)
    a(f"s_add_u32 s{sT2}, s{sWave}, 8")
    a(f"s_sub_u32 s{sT3}, s{sWave}, 4")
    a(f"s_cmp_lt_u32 s{sWave}, 4")
    a(f"s_cselect_b32 s{sT2}, s{sT2}, s{sT3}")
    a(f"s_cselect_b32 s{sE1sel}, 1, 0")
    wpiece(sWoE1, sWlE1, sT2)
    a(f"s_add_u32 s{sWoO}, s{sWoO}, 196608")
    for q in range(4):
        a(f"s_mov_b32 s{sXo[q]}, {q*131072}")
    a(f"s_lshl_b32 s{sXw}, s{sWave}, 10")

    NREC_W = 6291456

    def dma_x(q, slot_sgpr):
        a(f"s_add_u32 m0, s{slot_sgpr}, {K1_XB + q*8192}")
        a("s_nop 0")
        a(f"buffer_load_dwordx4 v{vXd}, s[{SX}:{SX+3}], s{sXo[q]} offen lds")

    def dma_w(so, lo, slot):
        a(f"s_add_u32 m0, s{lo}, {slot}")
        a(f"s_min_u32 s{sT0}, s{so}, {NREC_W}")
        a(f"buffer_load_dwordx4 v{vWd}, s[{SW}:{SW+3}], s{sT0} offen lds")

    dma_x(0, sXw); dma_x(1, sXw)
    a(f"s_cmp_eq_u32 s{sE1sel}, 1")
    a(f"s_cselect_b32 s{sT1}, {NREC_W}, s{sWoE1}")
    a(f"s_cselect_b32 s{sT2}, {4*12288}, 0")
    a(f"s_add_u32 m0, s{sWlE1}, s{sT2}")
    a("s_nop 0")
    a(f"buffer_load_dwordx4 v{vWd}, s[{SW}:{SW+3}], s{sT1} offen lds")
    dma_w(sWoE2, sWlE2, 0)
    dma_x(2, sXw); dma_x(3, sXw)
    dma_w(sWoO, sWlO, 12288)
    for q in range(4):
        a(f"s_add_u32 s{sXo[q]}, s{sXo[q]}, 128")
    a(f"s_add_u32 s{sXw}, s{sXw}, 32768")
    a(f"s_cmp_eq_u32 s{sE1sel}, 1")
    a(f"s_cselect_b32 s{sT3}, 1, 2")
    a(f"s_mul_i32 s{sT1}, s{sT3}, 196608")
    a(f"s_mul_i32 s{sT2}, s{sT3}, 12288")
    a(f"s_add_u32 s{sWoE1}, s{sWoE1}, s{sT1}")
    a(f"s_add_u32 s{sWoE2}, s{sWoE2}, {2*196608}")
    a(f"s_add_u32 s{sWoO}, s{sWoO}, {2*196608}")
    dma_x(0, sXw); dma_x(1, sXw)
    dma_w(sWoE1, sWlE1, f"s{sT2}")
    dma_w(sWoE2, sWlE2, 2 * 12288)
    dma_x(2, sXw); dma_x(3, sXw)
    dma_w(sWoO, sWlO, 3 * 12288)
    for q in range(4):
        a(f"s_add_u32 s{sXo[q]}, s{sXo[q]}, 128")
    a(f"s_add_u32 s{sXw}, s{sXw}, 32768")
    a(f"s_add_u32 s{sWoE1}, s{sWoE1}, {2*196608}")
    a(f"s_add_u32 s{sWoE2}, s{sWoE2}, {2*196608}")
    a(f"s_add_u32 s{sWoO}, s{sWoO}, {2*196608}")
    for i in range(96):
        a(f"v_mov_b32 v{ACC+i}, 0")
    a(f"s_mov_b32 s{sXr}, 0")
    a(f"s_mov_b32 s{sWr}, 0")
    a(f"s_mov_b32 s{sWp1}, {4*12288}")
    a(f"s_mov_b32 s{sWp2}, {3*12288}")
    for ks in range(4):
        if ks == 0:
            a(f"v_mov_b32 v{vXr[0]}, v{vXb}")
        else:
            a(f"v_xor_b32 v{vXr[ks]}, {32*ks}, v{vXb}")
    a(f"v_mov_b32 v{vWr}, v{vWb}")

    def reads(st, ks, kh):
        r = []
        r.append(f"ds_read_b128 {vr(xf(st,0),4)}, v{vXr[ks]}")
        for t4 in range(2):
            r.append(f"ds_read_b64_tr_b16 {vr(wf(st,0)+2*t4,2)}, v{vWr} offset:{0*4096+kh*2048+t4*512}")
        r.append(f"ds_read_b128 {vr(xf(st,1),4)}, v{vXr[ks]} offset:4096")
        for s in (1, 2):
            for t4 in range(2):
                r.append(f"ds_read_b64_tr_b16 {vr(wf(st,s)+2*t4,2)}, v{vWr} offset:{s*4096+kh*2048+t4*512}")
        return r

    def mfmas(st):
        m = []
        if os.environ.get("HACK16"):
            for s in range(3):
                for tt in range(2):
                    d0 = acc(s, tt) + st * 8
                    m.append(f"v_mfma_f32_16x16x32_bf16 {vr(d0,4)}, {vr(wf(st,s),4)}, {vr(xf(st,tt),4)}, {vr(d0,4)}\n    "
                             f"v_mfma_f32_16x16x32_bf16 {vr(d0+4,4)}, {vr(wf(st,(s+1)%3),4)}, {vr(xf(st,tt),4)}, {vr(d0+4,4)}")
            return m
        for s in range(3):
            for tt in range(2):
                if s < 2:
                    m.append(f"v_mfma_f32_32x32x16_bf16 {vr(acc(s,tt),16)}, {vr(wf(st,s),4)}, {vr(xf(st,tt),4)}, {vr(acc(s,tt),16)}")
                else:
                    m.append(f"v_mfma_f32_32x32x16_bf16 {vr(acc(s,tt),16)}, {vr(xf(st,tt),4)}, {vr(wf(st,s),4)}, {vr(acc(s,tt),16)}")
        return m

    def group_even():
        g = []
        for q in (0, 1):
            g.append([f"s_add_u32 m0, s{sXw}, {K1_XB + q*8192}", "s_nop 0",
                      f"buffer_load_dwordx4 v{vXd}, s[{SX}:{SX+3}], s{sXo[q]} offen lds"])
        g.append([f"s_cmp_eq_u32 s{sE1sel}, 1",
                  f"s_cselect_b32 s{sT2}, s{sWp2}, s{sWp1}",
                  f"s_add_u32 m0, s{sWlE1}, s{sT2}",
                  f"s_min_u32 s{sT0}, s{sWoE1}, {NREC_W}",
                  f"buffer_load_dwordx4 v{vWd}, s[{SW}:{SW+3}], s{sT0} offen lds"])
        g.append([f"s_add_u32 m0, s{sWlE2}, s{sWp1}",
                  f"s_min_u32 s{sT0}, s{sWoE2}, {NREC_W}",
                  f"buffer_load_dwordx4 v{vWd}, s[{SW}:{SW+3}], s{sT0} offen lds"])
        return g

    def group_odd():
        g = []
        for q in (2, 3):
            g.append([f"s_add_u32 m0, s{sXw}, {K1_XB + q*8192}", "s_nop 0",
                      f"buffer_load_dwordx4 v{vXd}, s[{SX}:{SX+3}], s{sXo[q]} offen lds"])
        g.append([f"s_add_u32 m0, s{sWlO}, s{sWp1}",
                  f"s_min_u32 s{sT0}, s{sWoO}, {NREC_W}",
                  f"buffer_load_dwordx4 v{vWd}, s[{SW}:{SW+3}], s{sT0} offen lds"])
        return g

    def adv_w_slot():
        return [f"s_mov_b32 s{sWp2}, s{sWp1}",
                f"s_mov_b32 s{sWp1}, s{sWr}",
                f"s_add_u32 s{sWr}, s{sWr}, 12288",
                f"s_cmp_eq_u32 s{sWr}, {5*12288}",
                f"s_cselect_b32 s{sWr}, 0, s{sWr}",
                f"v_add_u32 v{vWr}, s{sWr}, v{vWb}"]

    stamp(a, 1)
    a("s_waitcnt vmcnt(7)")
    a("s_barrier")
    stamp(a, 2)
    for r in reads(0, 0, 0):
        a(r)
    for g in group_even():
        for x in g:
            a(x)
    for q in (0, 1):
        a(f"s_add_u32 s{sXo[q]}, s{sXo[q]}, 128")
    a(f"s_add_u32 s{sWoE1}, s{sWoE1}, {2*196608}")
    a(f"s_add_u32 s{sWoE2}, s{sWoE2}, {2*196608}")
    a(f"s_mov_b32 s{sI}, 0")

    def emit_substep(st, rd, pre, dmas, post):
        m = mfmas(st)
        if os.environ.get("NODMA"):
            dmas = []
        if os.environ.get("NOMFMA"):
            m = ["s_nop 0"] * 6
        if os.environ.get("NOREAD"):
            rd = ["s_nop 0"] * 8
        for x in pre:
            a(x)
        a(m[0]); a(rd[0]); a(rd[1]); a(rd[2])
        a(m[1]); a(rd[3]); a(rd[4]); a(rd[5])
        a(m[2]); a(rd[6]); a(rd[7])
        k = 0
        for mi in range(3, 6):
            a(m[mi])
            n = (len(dmas) + 2 - (mi - 3)) // 3 if dmas else 0
            for _ in range(n):
                if k < len(dmas):
                    for x in dmas[k]:
                        a(x)
                    k += 1
        while k < len(dmas):
            for x in dmas[k]:
                a(x)
            k += 1
        for x in post:
            a(x)

    a(".p2align 6")
    a.label("K1_LOOP")
    emit_substep(0, reads(1, 1, 1), ["s_waitcnt lgkmcnt(0)"], [], [])
    pre = adv_w_slot() + ["s_waitcnt vmcnt(7) lgkmcnt(0)", "s_barrier"]
    post = []
    post += [f"s_cmp_ge_u32 s{sI}, 13"]
    for q in (2, 3):
        post += [f"s_add_u32 s{sT0}, s{sXo[q]}, 128"]
        post += [f"s_cmp_ge_u32 s{sI}, 13", f"s_cselect_b32 s{sXo[q]}, 524288, s{sT0}"]
    post += [f"s_add_u32 s{sWoO}, s{sWoO}, {2*196608}"]
    emit_substep(1, reads(0, 2, 0), pre, group_odd(), post)
    post = [f"s_lshl_b32 s{sT0}, s{sWave}, 10",
            f"s_add_u32 s{sXw}, s{sXr}, s{sT0}",
            f"s_add_u32 s{sXr}, s{sXr}, 32768",
            f"s_cmp_eq_u32 s{sXr}, {3*32768}",
            f"s_cselect_b32 s{sXr}, 0, s{sXr}",
            f"v_add_u32 v{vXr[0]}, s{sXr}, v{vXb}",
            f"v_xor_b32 v{vXr[1]}, 32, v{vXr[0]}",
            f"v_xor_b32 v{vXr[2]}, 64, v{vXr[0]}"]
    emit_substep(0, reads(1, 3, 1), ["s_waitcnt lgkmcnt(0)"], [], post)
    pre = adv_w_slot() + [f"v_xor_b32 v{vXr[3]}, 96, v{vXr[0]}", "s_waitcnt vmcnt(7) lgkmcnt(0)", "s_barrier"]
    post = []
    for q in (0, 1):
        post += [f"s_add_u32 s{sT0}, s{sXo[q]}, 128"]
        post += [f"s_cmp_ge_u32 s{sI}, 12", f"s_cselect_b32 s{sXo[q]}, 524288, s{sT0}"]
    post += [f"s_add_u32 s{sWoE1}, s{sWoE1}, {2*196608}",
             f"s_add_u32 s{sWoE2}, s{sWoE2}, {2*196608}",
             f"s_add_u32 s{sI}, s{sI}, 1",
             f"s_cmp_lt_u32 s{sI}, 16",
             "s_cbranch_scc1 K1_LOOP"]
    emit_substep(1, reads(0, 0, 0), pre, group_even(), post)

    stamp(a, 3)
    a("s_nop 15")
    sHead, sTile = 64, 65
    a(f"s_lshl_b32 s{sHead}, s{sHp}, 1")
    a(f"s_add_u32 s{sHead}, s{sHead}, s{sWn}")
    a(f"s_lshl_b32 s{sTile}, s{sMblk}, 3")
    a(f"s_lshl_b32 s{sT0}, s{sWm}, 1")
    a(f"s_add_u32 s{sTile}, s{sTile}, s{sT0}")
    a(f"s_lshl_b32 s{sT0}, s{sHead}, 6")
    a(f"s_add_u32 s{sT0}, s{sT0}, s{sTile}")
    vL16 = vT
    a(f"v_lshlrev_b32 v{vL16}, 4, v{vLane}")
    a(f"s_cmp_eq_u32 s{sProb}, 1")
    a("s_cbranch_scc1 K1_EPI_B")
    sQo, sKo = 66, 67
    a(f"s_lshl_b32 s{sQo}, s{sT0}, 11")
    a(f"s_add_u32 s{sQo}, s{sQo}, {QA_OFF}")
    a(f"s_lshl_b32 s{sKo}, s{sT0}, 12")
    a(f"s_add_u32 s{sKo}, s{sKo}, {KVA_OFF}")
    a(f"s_add_u32 s{sT1}, s{sKo}, 4096")
    a(f"s_mov_b32 s{sT2}, {f32hex(QSCALE)}")
    PK = FR
    n = 0
    for s in range(3):
        for tt in range(2):
            A0 = acc(s, tt)
            P = PK + (n % 4) * 8
            n += 1
            if s == 0:
                for i in range(16):
                    a(f"v_mul_f32 v{A0+i}, s{sT2}, v{A0+i}")
            for i in range(8):
                a(f"v_cvt_pk_bf16_f32 v{P+i}, v{A0+2*i}, v{A0+2*i+1}")
            if s == 0:
                so, off = sQo, tt * 2048
            else:
                so, off = (sKo if tt == 0 else sT1), (s - 1) * 2048
            a(f"buffer_store_dwordx4 {vr(P,4)}, v{vL16}, s[{SWS}:{SWS+3}], s{so} offen offset:{off}")
            a(f"buffer_store_dwordx4 {vr(P+4,4)}, v{vL16}, s[{SWS}:{SWS+3}], s{so} offen offset:{off+1024}")
    if STAMP:
        stamp(a, 4)
        a("s_waitcnt vmcnt(0)")
        stamp(a, 5); stamp(a, 7, True)
        stamp_store(a, sWave, 0, 16)
    a("s_endpgm")

    a.label("K1_EPI_B")
    a(f"s_lshl_b32 s{sQo}, s{sT0}, 11")
    a(f"s_add_u32 s{sQo}, s{sQo}, {QB_OFF}")
    a(f"s_mov_b32 s{S_LOG2E}, {f32hex(LOG2E)}")
    a(f"s_mov_b32 s{S_NLOG2E}, {f32hex(-LOG2E)}")
    a("s_waitcnt vmcnt(0) lgkmcnt(0)")
    a("s_barrier")
    PHIW = 131072
    a(f"s_lshl_b32 s{sT1}, s{sWave}, 11")
    a(f"s_add_u32 s{sT1}, s{sT1}, {PHIW}")
    a(f"s_lshl_b32 s{sT2}, s{sHead}, 11")
    a(f"s_mov_b32 m0, s{sT1}")
    a("s_nop 0")
    a(f"buffer_load_dwordx4 v{vL16}, s[{SPHI}:{SPHI+3}], s{sT2} offen lds")
    a(f"buffer_load_dwordx4 v{vL16}, s[{SPHI}:{SPHI+3}], s{sT2} offen offset:1024 lds")
    for tt in range(2):
        A0 = acc(0, tt)
        P = PK + tt * 8
        for i in range(8):
            a(f"v_cvt_pk_bf16_f32 v{P+i}, v{A0+2*i}, v{A0+2*i+1}")
        a(f"buffer_store_dwordx4 {vr(P,4)}, v{vL16}, s[{SWS}:{SWS+3}], s{sQo} offen offset:{tt*2048}")
        a(f"buffer_store_dwordx4 {vr(P+4,4)}, v{vL16}, s[{SWS}:{SWS+3}], s{sQo} offen offset:{tt*2048+1024}")
    KF = 128
    VF = 144
    WPH = 160
    ONES = 168
    PHI = 172
    AF = 188
    EE = 204
    TT = 236
    SS = ACC
    KV = ACC + 16
    for tt in range(2):
        for i in range(8):
            a(f"v_cvt_pk_bf16_f32 v{KF+tt*8+i}, v{acc(1,tt)+2*i}, v{acc(1,tt)+2*i+1}")
        for i in range(8):
            a(f"v_cvt_pk_bf16_f32 v{VF+tt*8+i}, v{acc(2,tt)+2*i}, v{acc(2,tt)+2*i+1}")
    KVa = [acc(0, 1), acc(1, 0)]
    Za = [acc(1, 1), acc(2, 0)]
    for i in range(4):
        a(f"v_mov_b32 v{ONES+i}, 0x3f803f80")
    vA = vT + 1
    a(f"v_bfe_u32 v{vT+2}, v{vLane}, 2, 2")
    a(f"v_lshrrev_b32 v{vT+3}, 5, v{vLane}")
    a(f"v_lshl_add_u32 v{vT+2}, v{vT+3}, 2, v{vT+2}")
    a(f"v_lshlrev_b32 v{vA}, 6, v{vT+2}")
    a(f"v_bfe_u32 v{vT+2}, v{vLane}, 4, 1")
    a(f"v_lshl_add_u32 v{vA}, v{vT+2}, 5, v{vA}")
    a(f"v_and_b32 v{vT+2}, 3, v{vLane}")
    a(f"v_lshl_add_u32 v{vA}, v{vT+2}, 3, v{vA}")
    a(f"v_add_u32 v{vA}, s{sT1}, v{vA}")
    a("s_waitcnt vmcnt(4)")
    for tp in range(2):
        for t4 in range(2):
            a(f"ds_read_b64_tr_b16 {vr(WPH+tp*4+t4*2,2)}, v{vA} offset:{tp*1024+t4*512}")
    vWa = vT + 2
    vRa = vT + 3
    vU = vT + 4
    a(f"v_and_b32 v{vU}, 31, v{vLane}")
    a(f"v_lshrrev_b32 v{vWa}, 5, v{vLane}")
    a(f"v_lshlrev_b32 v{vWa}, 1, v{vWa}")
    a(f"v_and_b32 v{vRa}, 7, v{vU}")
    a(f"v_xor_b32 v{vWa}, v{vWa}, v{vRa}")
    a(f"v_lshlrev_b32 v{vWa}, 4, v{vWa}")
    a(f"v_lshl_add_u32 v{vWa}, v{vU}, 7, v{vWa}")
    a(f"s_lshl_b32 s{sT2}, s{sWave}, 13")
    a(f"v_add_u32 v{vWa}, s{sT2}, v{vWa}")
    a(f"v_bfe_u32 v{vU}, v{vLane}, 2, 2")
    a(f"v_lshrrev_b32 v{vRa}, 5, v{vLane}")
    a(f"v_lshl_add_u32 v{vU}, v{vRa}, 2, v{vU}")
    a(f"v_and_b32 v{vRa}, 1, v{vLane}")
    a(f"v_lshlrev_b32 v{vRa}, 1, v{vRa}")
    a(f"v_bfe_u32 v{TT}, v{vLane}, 4, 1")
    a(f"v_add_u32 v{vRa}, v{vRa}, v{TT}")
    a(f"v_xor_b32 v{vRa}, v{vRa}, v{vU}")
    a(f"v_lshlrev_b32 v{vRa}, 4, v{vRa}")
    a(f"v_lshl_add_u32 v{vRa}, v{vU}, 7, v{vRa}")
    a(f"v_bfe_u32 v{TT}, v{vLane}, 1, 1")
    a(f"v_lshl_add_u32 v{vRa}, v{TT}, 3, v{vRa}")
    a(f"v_add_u32 v{vRa}, s{sT2}, v{vRa}")
    vRb = vU
    a(f"v_xor_b32 v{vRb}, 64, v{vRa}")
    vW2, vW3, vW4 = TT + 8, TT + 9, TT + 10
    a(f"v_xor_b32 v{vW2}, 16, v{vWa}")
    a(f"v_xor_b32 v{vW3}, 64, v{vWa}")
    a(f"v_xor_b32 v{vW4}, 0x50, v{vWa}")
    a("s_waitcnt lgkmcnt(0)")
    for tt in range(2):
        mfma32(a, SS, WPH, KF + tt * 8, None)
        mfma32(a, SS, WPH + 4, KF + tt * 8 + 4, SS)
        a("s_nop 15")
        softmax_pm(a, SS, EE, TT, PHI)
        a(f"ds_write_b128 v{vWa}, {vr(PHI,4)} offset:{tt*4096}")
        a(f"ds_write_b128 v{vW2}, {vr(PHI+4,4)} offset:{tt*4096}")
        a(f"ds_write_b128 v{vW3}, {vr(PHI+8,4)} offset:{tt*4096}")
        a(f"ds_write_b128 v{vW4}, {vr(PHI+12,4)} offset:{tt*4096}")
        a("s_waitcnt lgkmcnt(0)")
        for fh in range(2):
            for t in range(2):
                for t4 in range(2):
                    a(f"ds_read_b64_tr_b16 {vr(AF+(fh*2+t)*4+t4*2,2)}, v{vRa if fh==0 else vRb} offset:{tt*4096+t*2048+t4*1024}")
        a("s_waitcnt lgkmcnt(0)")
        for fh in range(2):
            for t in range(2):
                first = (tt == 0 and t == 0)
                mfma32(a, KVa[fh], AF + (fh * 2 + t) * 4, VF + tt * 8 + t * 4, None if first else KVa[fh])
                mfma32(a, Za[fh], AF + (fh * 2 + t) * 4, ONES, None if first else Za[fh])
    a("s_nop 15")
    RED, ZRED = 65536, 147456
    a(f"s_lshl_b32 s{sT2}, s{sWave}, 13")
    a(f"s_add_u32 s{sT2}, s{sT2}, {RED}")
    a(f"v_add_u32 v{vWa}, s{sT2}, v{vL16}")
    for fh in range(2):
        for q4 in range(4):
            a(f"ds_write_b128 v{vWa}, {vr(KVa[fh]+q4*4,4)} offset:{(fh*4+q4)*1024}")
    a(f"v_lshrrev_b32 v{vRa}, 5, v{vLane}")
    a(f"v_lshlrev_b32 v{vRa}, 5, v{vRa}")
    a(f"s_lshl_b32 s{sT2}, s{sWave}, 8")
    a(f"s_add_u32 s{sT2}, s{sT2}, {ZRED}")
    a(f"v_add_u32 v{vRa}, s{sT2}, v{vRa}")
    a(f"s_mov_b32 s{sT2}, 1")
    a(f"s_mov_b32 s{sT3}, 1")
    a(f"s_mov_b64 exec, s[{sT2}:{sT3}]")
    for fh in range(2):
        for q4 in range(4):
            a(f"ds_write_b128 v{vRa}, {vr(Za[fh]+q4*4,4)} offset:{(fh*2+q4//2)*64+(q4%2)*16}")
    a("s_mov_b64 exec, -1")
    a("s_waitcnt lgkmcnt(0)")
    a("s_barrier")
    a(f"s_lshl_b32 s{sT2}, s{sWn}, 15")
    a(f"s_lshl_b32 s{sT3}, s{sWm}, 11")
    a(f"s_add_u32 s{sT2}, s{sT2}, s{sT3}")
    a(f"s_add_u32 s{sT2}, s{sT2}, {RED}")
    a(f"v_add_u32 v{vWa}, s{sT2}, v{vL16}")
    for w4 in range(4):
        for qq in range(2):
            a(f"ds_read_b128 {vr(EE+(w4*2+qq)*4,4)}, v{vWa} offset:{w4*8192+qq*1024}")
    a(f"s_lshl_b32 s{sT2}, s{sWn}, 10")
    a(f"s_add_u32 s{sT2}, s{sT2}, {ZRED}")
    a(f"v_lshlrev_b32 v{vRa}, 2, v{vLane}")
    a(f"v_add_u32 v{vU}, s{sT2}, v{vRa}")
    for w4 in range(4):
        a(f"ds_read_b32 v{TT+w4}, v{vU} offset:{w4*256}")
    a("s_waitcnt lgkmcnt(0)")
    for w4 in range(1, 4):
        for i in range(8):
            a(f"v_add_f32 v{EE+i}, v{EE+i}, v{EE+w4*8+i}")
        a(f"v_add_f32 v{TT}, v{TT}, v{TT+w4}")
    a(f"s_lshl_b32 s{sT2}, s{sHead}, 3")
    a(f"s_add_u32 s{sT2}, s{sT2}, s{sMblk}")
    a(f"s_lshl_b32 s{sT1}, s{sT2}, 13")
    a(f"s_add_u32 s{sT1}, s{sT1}, s{sT3}")
    a(f"s_add_u32 s{sT1}, s{sT1}, {KVP_OFF}")
    a(f"buffer_store_dwordx4 {vr(EE,4)}, v{vL16}, s[{SWS}:{SWS+3}], s{sT1} offen")
    a(f"buffer_store_dwordx4 {vr(EE+4,4)}, v{vL16}, s[{SWS}:{SWS+3}], s{sT1} offen offset:1024")
    a(f"s_cmp_lg_u32 s{sWm}, 0")
    a("s_cbranch_scc1 K1_END2")
    a(f"s_lshl_b32 s{sT2}, s{sT2}, 8")
    a(f"s_add_u32 s{sT2}, s{sT2}, {ZP_OFF}")
    a(f"buffer_store_dword v{TT}, v{vRa}, s[{SWS}:{SWS+3}], s{sT2} offen")
    a.label("K1_END2")
    if STAMP:
        stamp(a, 4)
        a("s_waitcnt vmcnt(0)")
        stamp(a, 5); stamp(a, 7, True)
        stamp_store(a, sWave, 0, 16)
    a.label("K1_END")
    a("s_endpgm")
    kernel_desc(a, name, 248)
    return name, (256, 1, 1), (512, 1, 1), K1_LDS


K2_RING = 4
K2_AUX = 131072
K2_LDS = 131072 + 8192


def gen_k2(a):
    name = "k2_attn_kernel"
    kernel_begin(a, name)
    SKV, SWS, SPHI = 4, 8, 12
    sHead, sQb, sWave, sTile = 20, 21, 22, 23
    sC, sKo, sLw = 24, 25, 26
    sCur, sNext = 27, 28
    sT0, sT1, sT2, sT3 = 32, 33, 34, 35
    sPtr = 40
    vLane, vL16 = 1, 2
    vCur, vNext = 3, 4
    vT = 5
    QF = 12
    KF = 20
    VF = 28
    S0 = 36
    S1 = 52
    P = 68
    O = 76
    L = 92
    SEL = 96
    HB = 100
    a("s_cmp_ge_u32 s2, 256")
    a("s_cbranch_scc1 K2_END")
    a(f"s_load_dwordx2 s[{sPtr}:{sPtr+1}], s[0:1], 72")
    a(f"s_load_dwordx2 s[{sPtr+2}:{sPtr+3}], s[0:1], 40")
    if STAMP:
        for i in range(16):
            a(f"s_mov_b32 s{S_ST+i}, 0")
    stamp(a, 0); stamp(a, 6, True)
    a(f"v_and_b32 v{vLane}, 63, v0")
    a(f"v_lshrrev_b32 v{vT}, 6, v0")
    a(f"s_and_b32 s{sT0}, s2, 7")
    a(f"s_lshr_b32 s{sT1}, s2, 3")
    a(f"v_readfirstlane_b32 s{sWave}, v{vT}")
    a(f"s_lshl_b32 s{sHead}, s{sT0}, 2")
    a(f"s_and_b32 s{sT2}, s{sT1}, 3")
    a(f"s_add_u32 s{sHead}, s{sHead}, s{sT2}")
    a(f"s_lshr_b32 s{sQb}, s{sT1}, 2")
    a(f"v_lshlrev_b32 v{vL16}, 4, v{vLane}")
    a(f"s_lshl_b32 s{sTile}, s{sQb}, 3")
    a(f"s_add_u32 s{sTile}, s{sTile}, s{sWave}")
    a("s_waitcnt lgkmcnt(0)")
    a(f"s_lshl_b32 s{sT0}, s{sHead}, 18")
    a(f"s_add_u32 s{sT0}, s{sT0}, {KVA_OFF}")
    a(f"s_add_u32 s{sT2}, s{sPtr}, s{sT0}")
    a(f"s_addc_u32 s{sT3}, s{sPtr+1}, 0")
    srd(a, SKV, sT2, sT3, 262144)
    srd(a, SWS, sPtr, sPtr + 1, WS_USED)
    srd(a, SPHI, sPtr + 2, sPtr + 3, 65536)
    a(f"s_lshl_b32 s{sT0}, s{sHead}, 6")
    a(f"s_add_u32 s{sT0}, s{sT0}, s{sTile}")
    a(f"s_lshl_b32 s{sT0}, s{sT0}, 11")
    a(f"s_add_u32 s{sT1}, s{sT0}, {QB_OFF}")
    QB = HB
    KP = HB + 8
    ZQ = HB + 40
    a(f"buffer_load_dwordx4 {vr(QB,4)}, v{vL16}, s[{SWS}:{SWS+3}], s{sT1} offen")
    a(f"buffer_load_dwordx4 {vr(QB+4,4)}, v{vL16}, s[{SWS}:{SWS+3}], s{sT1} offen offset:1024")
    a(f"s_lshl_b32 s{sT1}, s{sHead}, 16")
    a(f"s_lshl_b32 s{sT2}, s{sWave}, 10")
    a(f"s_add_u32 s{sT1}, s{sT1}, s{sT2}")
    a(f"s_add_u32 s{sT1}, s{sT1}, {KVP_OFF}")
    for mb in range(8):
        a(f"buffer_load_dwordx4 {vr(KP+4*mb,4)}, v{vL16}, s[{SWS}:{SWS+3}], s{sT1} offen")
        a(f"s_add_u32 s{sT1}, s{sT1}, 8192")
    a(f"s_lshl_b32 s{sT1}, s{sHead}, 11")
    a(f"s_add_u32 s{sT1}, s{sT1}, {ZP_OFF}")
    a(f"v_lshlrev_b32 v{vT}, 2, v{vLane}")
    for mb in range(8):
        a(f"buffer_load_dword v{ZQ+mb}, v{vT}, s[{SWS}:{SWS+3}], s{sT1} offen offset:{mb*256}")
    a(f"s_lshl_b32 s{sT1}, s{sHead}, 11")
    a(f"s_mov_b32 m0, {K2_AUX+6144}")
    a("s_nop 0")
    a(f"buffer_load_dwordx4 v{vL16}, s[{SPHI}:{SPHI+3}], s{sT1} offen lds")
    a(f"buffer_load_dwordx4 v{vL16}, s[{SPHI}:{SPHI+3}], s{sT1} offen offset:1024 lds")
    a(f"s_add_u32 s{sT1}, s{sT0}, {QA_OFF}")
    a(f"buffer_load_dwordx4 {vr(QF,4)}, v{vL16}, s[{SWS}:{SWS+3}], s{sT1} offen")
    a(f"buffer_load_dwordx4 {vr(QF+4,4)}, v{vL16}, s[{SWS}:{SWS+3}], s{sT1} offen offset:1024")
    a(f"s_lshl_b32 s{sKo}, s{sWave}, 12")
    a(f"s_mov_b32 s{sLw}, s{sKo}")

    def dma_chunk():
        a(f"s_mov_b32 m0, s{sLw}")
        a(f"s_min_u32 s{sT0}, s{sKo}, 262144")
        for i in range(4):
            a(f"buffer_load_dwordx4 v{vL16}, s[{SKV}:{SKV+3}], s{sT0} offen offset:{i*1024} lds")
        a(f"s_add_u32 s{sKo}, s{sKo}, 32768")
        a(f"s_add_u32 s{sLw}, s{sLw}, 32768")
        a(f"s_and_b32 s{sLw}, s{sLw}, {K2_RING*32768-1}")
    for c in range(3):
        dma_chunk()
    a(f"s_mov_b32 s{S_LOG2E}, {f32hex(LOG2E)}")
    a(f"s_mov_b32 s{S_NLOG2E}, {f32hex(-LOG2E)}")
    a("s_waitcnt vmcnt(16)")
    for mb in range(1, 8):
        for i in range(4):
            a(f"v_add_f32 v{KP+i}, v{KP+i}, v{KP+4*mb+i}")
        a(f"v_add_f32 v{ZQ}, v{ZQ}, v{ZQ+mb}")
    a(f"v_cvt_pk_bf16_f32 v{KP+4}, v{KP}, v{KP+1}")
    a(f"v_cvt_pk_bf16_f32 v{KP+5}, v{KP+2}, v{KP+3}")
    a(f"v_cvt_pk_bf16_f32 v{ZQ}, v{ZQ}, v{ZQ}")
    a(f"s_lshr_b32 s{sT0}, s{sWave}, 1")
    a(f"s_lshl_b32 s{sT0}, s{sT0}, 10")
    a(f"s_and_b32 s{sT1}, s{sWave}, 1")
    a(f"s_lshl_b32 s{sT1}, s{sT1}, 3")
    a(f"s_add_u32 s{sT0}, s{sT0}, s{sT1}")
    a(f"s_add_u32 s{sT0}, s{sT0}, {K2_AUX}")
    a(f"v_add_u32 v{vT+1}, s{sT0}, v{vL16}")
    a(f"ds_write_b64 v{vT+1}, {vr(KP+4,2)}")
    a(f"v_lshlrev_b32 v{vT+1}, 1, v{vLane}")
    a(f"v_add_u32 v{vT+1}, {K2_AUX+4096}, v{vT+1}")
    a(f"ds_write_b16 v{vT+1}, v{ZQ}")
    vA = vT + 1
    a(f"v_bfe_u32 v{vT+2}, v{vLane}, 2, 2")
    a(f"v_lshrrev_b32 v{vT+3}, 5, v{vLane}")
    a(f"v_lshl_add_u32 v{vT+2}, v{vT+3}, 2, v{vT+2}")
    a(f"v_lshlrev_b32 v{vA}, 6, v{vT+2}")
    a(f"v_bfe_u32 v{vT+2}, v{vLane}, 4, 1")
    a(f"v_lshl_add_u32 v{vA}, v{vT+2}, 5, v{vA}")
    a(f"v_and_b32 v{vT+2}, 3, v{vLane}")
    a(f"v_lshl_add_u32 v{vA}, v{vT+2}, 3, v{vA}")
    a(f"v_add_u32 v{vA}, {K2_AUX+6144}, v{vA}")
    a(f"v_lshlrev_b32 v{vT+3}, 4, v{vT+3}")
    a(f"v_add_u32 v{vT+3}, {K2_AUX+4096}, v{vT+3}")
    a(f"v_add_u32 v{vT+2}, {K2_AUX}, v{vL16}")
    a("s_waitcnt vmcnt(14) lgkmcnt(0)")
    a("s_barrier")
    WPH = HB + 8
    KVF = HB + 16
    ZF = HB + 32
    PHI = HB + 48
    EE = HB + 64
    TT = HB + 96
    NUM, DEN = S0, S1
    SS = O
    for tp in range(2):
        for t4 in range(2):
            a(f"ds_read_b64_tr_b16 {vr(WPH+tp*4+t4*2,2)}, v{vA} offset:{tp*1024+t4*512}")
    for f in range(4):
        a(f"ds_read_b128 {vr(KVF+4*f,4)}, v{vT+2} offset:{f*1024}")
        a(f"ds_read_b128 {vr(ZF+4*f,4)}, v{vT+3} offset:{f*32}")
    a("s_waitcnt lgkmcnt(8)")
    mfma32(a, SS, WPH, QB, None)
    mfma32(a, SS, WPH + 4, QB + 4, SS)
    a("s_nop 15")
    softmax_pm(a, SS, EE, TT, PHI)
    a("s_waitcnt lgkmcnt(0)")
    a("s_nop 0")
    for f in range(4):
        mfma32(a, DEN, ZF + 4 * f, PHI + 4 * f, None if f == 0 else DEN)
        mfma32(a, NUM, KVF + 4 * f, PHI + 4 * f, None if f == 0 else NUM)
    a(f"s_mov_b32 s{sT0}, {f32hex(1e-6)}")
    a("s_nop 15")
    a(f"v_add_f32 v{TT}, s{sT0}, v{DEN}")
    a(f"v_rcp_f32 v{TT}, v{TT}")
    a("s_nop 0")
    for i in range(16):
        a(f"v_mul_f32 v{NUM+i}, v{NUM+i}, v{TT}")
    for i in range(8):
        a(f"v_cvt_pk_bf16_f32 v{PHI+i}, v{NUM+2*i}, v{NUM+2*i+1}")
    sOo = 36
    a(f"s_lshl_b32 s{sOo}, s{sTile}, 5")
    a(f"s_add_u32 s{sOo}, s{sOo}, s{sHead}")
    a(f"s_lshl_b32 s{sOo}, s{sOo}, 11")
    a(f"s_add_u32 s{sOo}, s{sOo}, {O_OFF}")
    a(f"s_add_u32 s{sT0}, s{sOo}, {4<<20}")
    a(f"buffer_store_dwordx4 {vr(PHI,4)}, v{vL16}, s[{SWS}:{SWS+3}], s{sT0} offen")
    a(f"buffer_store_dwordx4 {vr(PHI+4,4)}, v{vL16}, s[{SWS}:{SWS+3}], s{sT0} offen offset:1024")
    stamp(a, 1)
    a(f"v_bfe_u32 v{vT}, v{vLane}, 4, 1")
    a(f"v_bfe_u32 v{vT+1}, v{vLane}, 2, 1")
    a(f"v_cmp_eq_u32 vcc, v{vT}, v{vT+1}")
    a(f"v_mov_b32 v{vT+2}, 0x3f803f80")
    a("s_nop 1")
    a(f"v_cndmask_b32 v{SEL}, 0, v{vT+2}, vcc")
    for i in range(1, 4):
        a(f"v_mov_b32 v{SEL+i}, v{SEL}")
    for i in range(16):
        a(f"v_mov_b32 v{O+i}, 0")
    for i in range(4):
        a(f"v_mov_b32 v{L+i}, 0")
        a(f"v_mov_b32 v{P+4+i}, 0")
        a(f"v_mov_b32 v{VF+4+i}, 0")
    a(f"s_mov_b32 s{sCur}, 0")
    a(f"s_mov_b32 s{sNext}, 32768")
    a(f"v_mov_b32 v{vCur}, v{vL16}")
    a(f"v_add_u32 v{vNext}, 32768, v{vL16}")
    a("s_waitcnt vmcnt(10)")
    a("s_barrier")
    stamp(a, 2)
    a(f"ds_read_b128 {vr(KF,4)}, v{vCur}")
    a(f"ds_read_b128 {vr(KF+4,4)}, v{vCur} offset:1024")
    a("s_waitcnt lgkmcnt(0)")
    mfma32(a, S0, KF, QF, None)
    mfma32(a, S0, KF + 4, QF + 4, S0)
    a(f"ds_read_b128 {vr(KF,4)}, v{vCur} offset:4096")
    a(f"ds_read_b128 {vr(KF+4,4)}, v{vCur} offset:{4096+1024}")
    a(f"ds_read_b128 {vr(VF,4)}, v{vCur} offset:2048")
    a("s_waitcnt lgkmcnt(0)")
    a(f"s_mov_b32 s{sC}, 0")
    a("s_nop 7")

    def rd(dst, tile, part):
        if tile < 8:
            return f"ds_read_b128 {vr(dst,4)}, v{vCur} offset:{tile*4096+part*1024}"
        return f"ds_read_b128 {vr(dst,4)}, v{vNext} offset:{(tile-8)*4096+part*1024}"

    a(".p2align 6")
    a.label("K2_LOOP")
    for t in range(8):
        Sc = S0 if t % 2 == 0 else S1
        Sn = S1 if t % 2 == 0 else S0
        e = lambda i: a(f"v_exp_f32 v{Sc+i}, v{Sc+i}")
        cv = lambda i: a(f"v_cvt_pk_bf16_f32 v{P+i}, v{Sc+2*i}, v{Sc+2*i+1}")
        if t == 6:
            a("s_waitcnt vmcnt(4)")
            a("s_barrier")
        a("s_waitcnt lgkmcnt(3)")
        mfma32(a, Sn, KF, QF, None)
        a(rd(KF, t + 2, 0))
        e(0); e(1); e(2); e(3)
        a("s_waitcnt lgkmcnt(3)")
        mfma32(a, O, VF + 4, P + 4, O)
        a(rd(VF + 4, t, 3))
        cv(0); e(4); cv(1); e(5)
        a("s_waitcnt lgkmcnt(3)")
        mfma32(a, Sn, KF + 4, QF + 4, Sn)
        a(rd(KF + 4, t + 2, 1))
        e(6); e(7); cv(2); e(8)
        mfma16(a, L, SEL, P + 4, L)
        cv(3); e(9); e(10); e(11)
        a("s_waitcnt lgkmcnt(3)")
        mfma32(a, O, VF, P, O)
        a(rd(VF, t + 1, 2))
        cv(4); e(12); cv(5); e(13)
        mfma16(a, L, SEL, P, L)
        if t == 6:
            dma_chunk()
        e(14); e(15); cv(6)
        if t == 7:
            a(f"s_mov_b32 s{sCur}, s{sNext}")
            a(f"s_add_u32 s{sNext}, s{sNext}, 32768")
            a(f"s_and_b32 s{sNext}, s{sNext}, {K2_RING*32768-1}")
            a(f"s_add_u32 s{sC}, s{sC}, 1")
        cv(7)
        if t == 7:
            a(f"v_mov_b32 v{vCur}, v{vNext}")
            a(f"v_add_u32 v{vNext}, s{sNext}, v{vL16}")
            a(f"s_cmp_lt_u32 s{sC}, 8")
            a("s_cbranch_scc1 K2_LOOP")
    stamp(a, 3)
    a("s_waitcnt lgkmcnt(0)")
    mfma32(a, O, VF + 4, P + 4, O)
    mfma16(a, L, SEL, P + 4, L)
    a("s_nop 15")
    a("s_nop 3")
    a(f"s_mov_b32 s{sT0}, 0x21800000")
    a(f"s_mov_b32 s{sT1}, 0x5d800000")
    a(f"v_cmp_nge_f32 s[{sPtr}:{sPtr+1}], v{L}, s{sT0}")
    a(f"v_cmp_nle_f32 vcc, v{L}, s{sT1}")
    a(f"s_or_b64 s[{sPtr}:{sPtr+1}], s[{sPtr}:{sPtr+1}], vcc")
    a(f"v_mul_f32 v{vT}, 0, v{O}")
    for i in range(1, 16):
        a(f"v_fma_f32 v{vT}, v{O+i}, 0, v{vT}")
    a(f"v_cmp_u_f32 vcc, v{vT}, v{vT}")
    a(f"s_or_b64 s[{sPtr}:{sPtr+1}], s[{sPtr}:{sPtr+1}], vcc")
    if os.environ.get("FORCE_SLOW"):
        a(f"s_mov_b64 s[{sPtr}:{sPtr+1}], -1")
    a(f"s_cmp_lg_u64 s[{sPtr}:{sPtr+1}], 0")
    a("s_cbranch_scc1 K2_SLOW")
    a.label("K2_FIN")
    a(f"v_rcp_f32 v{vT}, v{L}")
    a("s_nop 0")
    for i in range(16):
        a(f"v_mul_f32 v{O+i}, v{O+i}, v{vT}")
    for i in range(8):
        a(f"v_cvt_pk_bf16_f32 v{P+i}, v{O+2*i}, v{O+2*i+1}")
    a(f"buffer_store_dwordx4 {vr(P,4)}, v{vL16}, s[{SWS}:{SWS+3}], s{sOo} offen")
    a(f"buffer_store_dwordx4 {vr(P+4,4)}, v{vL16}, s[{SWS}:{SWS+3}], s{sOo} offen offset:1024")
    if STAMP:
        stamp(a, 4)
        a("s_waitcnt vmcnt(0)")
        stamp(a, 5); stamp(a, 7, True)
        stamp_store(a, sWave, 1, 16)
    a.label("K2_END")
    a("s_endpgm")
    a.label("K2_SLOW")
    vM, vLs, vMx, vAl, vU = vT, vT + 1, vT + 2, vT + 3, vT + 4
    a(f"v_mov_b32 v{vM}, 0xff800000")
    a(f"v_mov_b32 v{vLs}, 0")
    for i in range(16):
        a(f"v_mov_b32 v{O+i}, 0")
    a(f"s_mov_b32 s{sT0}, 0")
    a.label("K2_SLOW_LOOP")
    for i in range(4):
        d = (KF, KF + 4, VF, VF + 4)[i]
        a(f"buffer_load_dwordx4 {vr(d,4)}, v{vL16}, s[{SKV}:{SKV+3}], s{sT0} offen offset:{i*1024}")
    a("s_waitcnt vmcnt(0)")
    mfma32(a, S0, KF, QF, None)
    mfma32(a, S0, KF + 4, QF + 4, S0)
    a("s_nop 15")
    a("s_nop 3")
    a(f"v_max3_f32 v{vMx}, v{S0}, v{S0+1}, v{vM}")
    for i in range(2, 16, 2):
        a(f"v_max3_f32 v{vMx}, v{S0+i}, v{S0+i+1}, v{vMx}")
    a(f"v_mov_b32 v{vU}, v{vMx}")
    a("s_nop 1")
    a(f"v_permlane32_swap_b32 v{vMx}, v{vU}")
    a("s_nop 1")
    a(f"v_max_f32 v{vMx}, v{vMx}, v{vU}")
    a(f"v_sub_f32 v{vAl}, v{vM}, v{vMx}")
    a(f"v_exp_f32 v{vAl}, v{vAl}")
    a(f"v_mov_b32 v{vM}, v{vMx}")
    for i in range(16):
        a(f"v_sub_f32 v{S0+i}, v{S0+i}, v{vMx}")
    for i in range(16):
        a(f"v_exp_f32 v{S0+i}, v{S0+i}")
    a(f"v_mul_f32 v{vLs}, v{vLs}, v{vAl}")
    for i in range(16):
        a(f"v_mul_f32 v{O+i}, v{O+i}, v{vAl}")
    for i in range(16):
        a(f"v_add_f32 v{vLs}, v{vLs}, v{S0+i}")
    for i in range(8):
        a(f"v_cvt_pk_bf16_f32 v{P+i}, v{S0+2*i}, v{S0+2*i+1}")
    a("s_nop 1")
    mfma32(a, O, VF, P, O)
    mfma32(a, O, VF + 4, P + 4, O)
    a("s_nop 15")
    a("s_nop 3")
    a(f"s_add_u32 s{sT0}, s{sT0}, 4096")
    a(f"s_cmp_lt_u32 s{sT0}, 262144")
    a("s_cbranch_scc1 K2_SLOW_LOOP")
    a(f"v_mov_b32 v{vU}, v{vLs}")
    a("s_nop 1")
    a(f"v_permlane32_swap_b32 v{vLs}, v{vU}")
    a("s_nop 1")
    a(f"v_add_f32 v{L}, v{vLs}, v{vU}")
    a("s_branch K2_FIN")
    kernel_desc(a, name, HB + 104)
    return name, (256, 1, 1), (512, 1, 1), K2_LDS


K3_NS = 5
K3_LDS = K3_NS * 32768


def gen_k3(a):
    name = "k3_oproj_kernel"
    kernel_begin(a, name)
    SX, SW, SO = 4, 8, 12
    sProb, sMb, sNb, sWave, sKh, sWm, sWn = 20, 21, 22, 23, 24, 25, 26
    sI, sRd, sWr = 27, 28, 29
    sXo, sWo = 30, 31
    sXl, sWl = 36, 37
    sT0, sT1, sT2, sT3 = 32, 33, 34, 35
    sPtr = 40
    vLane, vL16, vWd = 1, 2, 3
    vXb, vWb, vXr, vWr = 4, 5, 6, 7
    vT = 8
    ACC = 16
    FR = 80
    def acc(ct, tt): return ACC + (ct * 2 + tt) * 16
    def xf(st, tt): return FR + st * 16 + tt * 4
    def wf(st, ct): return FR + st * 16 + 8 + ct * 4
    a("s_cmp_ge_u32 s2, 256")
    a("s_cbranch_scc1 K3_END")
    a(f"s_load_dwordx2 s[{sPtr}:{sPtr+1}], s[0:1], 16")
    a(f"s_load_dwordx4 s[{sPtr+4}:{sPtr+7}], s[0:1], 48")
    a(f"s_load_dwordx2 s[{sPtr+2}:{sPtr+3}], s[0:1], 72")
    if STAMP:
        for i in range(16):
            a(f"s_mov_b32 s{S_ST+i}, 0")
    stamp(a, 0); stamp(a, 6, True)
    a(f"v_and_b32 v{vLane}, 63, v0")
    a(f"v_lshrrev_b32 v{vT}, 6, v0")
    a(f"s_and_b32 s{sT0}, s2, 7")
    a(f"s_lshr_b32 s{sT1}, s2, 3")
    a(f"v_readfirstlane_b32 s{sWave}, v{vT}")
    a(f"s_lshr_b32 s{sProb}, s{sT0}, 2")
    a(f"s_bfe_u32 s{sT2}, s{sT0}, 0x10001")
    a(f"s_lshl_b32 s{sT2}, s{sT2}, 3")
    a(f"s_and_b32 s{sT3}, s{sT1}, 7")
    a(f"s_add_u32 s{sMb}, s{sT2}, s{sT3}")
    a(f"s_and_b32 s{sT2}, s{sT0}, 1")
    a(f"s_lshl_b32 s{sT2}, s{sT2}, 2")
    a(f"s_lshr_b32 s{sT3}, s{sT1}, 3")
    a(f"s_add_u32 s{sNb}, s{sT2}, s{sT3}")
    a(f"s_lshr_b32 s{sKh}, s{sWave}, 2")
    a(f"s_bfe_u32 s{sWm}, s{sWave}, 0x10001")
    a(f"s_and_b32 s{sWn}, s{sWave}, 1")
    a(f"v_lshlrev_b32 v{vL16}, 4, v{vLane}")
    a(f"v_lshrrev_b32 v{vT}, 3, v{vLane}")
    a(f"v_bfe_u32 v{vT+2}, v{vT}, 1, 1")
    a(f"v_lshlrev_b32 v{vT+2}, 2, v{vT+2}")
    a(f"v_and_b32 v{vT+3}, 7, v{vLane}")
    a(f"v_xor_b32 v{vT+2}, v{vT+2}, v{vT+3}")
    a(f"v_lshlrev_b32 v{vT+2}, 4, v{vT+2}")
    a(f"v_lshl_add_u32 v{vWd}, v{vT}, 11, v{vT+2}")
    a("s_waitcnt lgkmcnt(0)")
    a(f"s_cmp_eq_u32 s{sProb}, 0")
    a(f"s_cselect_b32 s{sT0}, s{sPtr}, s{sPtr+4}")
    a(f"s_cselect_b32 s{sT1}, s{sPtr+1}, s{sPtr+5}")
    srd(a, SW, sT0, sT1, 2097152)
    a(f"s_lshl_b32 s{sT0}, s{sProb}, 22")
    a(f"s_lshl_b32 s{sT1}, s{sMb}, 18")
    a(f"s_add_u32 s{sT0}, s{sT0}, s{sT1}")
    a(f"s_add_u32 s{sT0}, s{sT0}, {O_OFF}")
    a(f"s_add_u32 s{sT2}, s{sPtr+2}, s{sT0}")
    a(f"s_addc_u32 s{sT3}, s{sPtr+3}, 0")
    srd(a, SX, sT2, sT3, 262144)
    srd(a, SO, sPtr + 6, sPtr + 7, 8388608)
    a(f"s_lshr_b32 s{sT0}, s{sWave}, 1")
    a(f"s_lshl_b32 s{sXo}, s{sT0}, 16")
    a(f"s_and_b32 s{sT1}, s{sWave}, 1")
    a(f"s_lshl_b32 s{sT1}, s{sT1}, 11")
    a(f"s_add_u32 s{sXo}, s{sXo}, s{sT1}")
    a(f"s_lshl_b32 s{sXl}, s{sWave}, 11")
    a(f"s_and_b32 s{sT0}, s{sWave}, 3")
    a(f"s_lshl_b32 s{sWo}, s{sT0}, 15")
    a(f"s_lshr_b32 s{sT1}, s{sWave}, 2")
    a(f"s_lshl_b32 s{sT1}, s{sT1}, 7")
    a(f"s_add_u32 s{sWo}, s{sWo}, s{sT1}")
    a(f"s_lshl_b32 s{sT1}, s{sNb}, 8")
    a(f"s_add_u32 s{sWo}, s{sWo}, s{sT1}")
    a(f"s_lshl_b32 s{sWl}, s{sWave}, 11")
    a(f"s_add_u32 s{sWl}, s{sWl}, 16384")
    a(f"s_mov_b32 s{sWr}, 0")
    a(f"s_mov_b32 s{sI}, 0")

    def dma_stage(lim):
        g = []
        g.append([f"s_add_u32 m0, s{sWr}, s{sXl}",
                  f"s_cmp_lt_u32 s{sI}, 16",
                  f"s_cselect_b32 s{sT0}, s{sXo}, 262144",
                  f"buffer_load_dwordx4 v{vL16}, s[{SX}:{SX+3}], s{sT0} offen lds"])
        g.append([f"buffer_load_dwordx4 v{vL16}, s[{SX}:{SX+3}], s{sT0} offen offset:1024 lds"])
        g.append([f"s_add_u32 m0, s{sWr}, s{sWl}",
                  f"s_min_u32 s{sT0}, s{sWo}, 2097152",
                  f"buffer_load_dwordx4 v{vWd}, s[{SW}:{SW+3}], s{sT0} offen lds"])
        g.append([f"s_add_u32 m0, m0, 1024",
                  f"s_add_u32 s{sT0}, s{sWo}, 16384",
                  f"s_min_u32 s{sT0}, s{sT0}, 2097152",
                  f"buffer_load_dwordx4 v{vWd}, s[{SW}:{SW+3}], s{sT0} offen lds"])
        g.append([f"s_add_u32 s{sXo}, s{sXo}, 4096",
                  f"s_add_u32 s{sWo}, s{sWo}, 131072",
                  f"s_add_u32 s{sI}, s{sI}, 1",
                  f"s_add_u32 s{sWr}, s{sWr}, 32768",
                  f"s_cmp_eq_u32 s{sWr}, {K3_NS*32768}",
                  f"s_cselect_b32 s{sWr}, 0, s{sWr}"])
        return g
    for st in range(K3_NS - 1):
        for g in dma_stage(None):
            for x in g:
                a(x)
    a(f"s_lshl_b32 s{sT0}, s{sWm}, 13")
    a(f"s_lshl_b32 s{sT1}, s{sKh}, 11")
    a(f"s_add_u32 s{sT0}, s{sT0}, s{sT1}")
    a(f"v_add_u32 v{vXb}, s{sT0}, v{vL16}")
    a(f"v_bfe_u32 v{vT}, v{vLane}, 2, 2")
    a(f"v_lshrrev_b32 v{vT+1}, 5, v{vLane}")
    a(f"v_lshl_add_u32 v{vT+2}, v{vT+1}, 2, v{vT}")
    a(f"v_lshlrev_b32 v{vWb}, 7, v{vT+2}")
    a(f"v_and_b32 v{vT+2}, 1, v{vLane}")
    a(f"v_lshlrev_b32 v{vT+2}, 1, v{vT+2}")
    a(f"v_bfe_u32 v{vT+3}, v{vLane}, 4, 1")
    a(f"v_add_u32 v{vT+2}, v{vT+2}, v{vT+3}")
    a(f"v_lshrrev_b32 v{vT+3}, 1, v{vT}")
    a(f"v_lshlrev_b32 v{vT+3}, 2, v{vT+3}")
    a(f"v_xor_b32 v{vT+2}, v{vT+2}, v{vT+3}")
    a(f"v_lshl_add_u32 v{vWb}, v{vT+2}, 4, v{vWb}")
    a(f"v_bfe_u32 v{vT+2}, v{vLane}, 1, 1")
    a(f"v_lshl_add_u32 v{vWb}, v{vT+2}, 3, v{vWb}")
    a(f"s_lshl_b32 s{sT0}, s{sWn}, 13")
    a(f"s_lshl_b32 s{sT1}, s{sKh}, 12")
    a(f"s_add_u32 s{sT0}, s{sT0}, s{sT1}")
    a(f"s_add_u32 s{sT0}, s{sT0}, 16384")
    a(f"v_add_u32 v{vWb}, s{sT0}, v{vWb}")
    vWr2 = vT + 4
    for i in range(64):
        a(f"v_mov_b32 v{ACC+i}, 0")
    a(f"s_mov_b32 s{sRd}, 0")
    a(f"v_mov_b32 v{vXr}, v{vXb}")
    a(f"v_mov_b32 v{vWr}, v{vWb}")
    a(f"v_xor_b32 v{vWr2}, 64, v{vWb}")

    def reads(st, tp):
        r = []
        r.append(f"ds_read_b128 {vr(xf(st,0),4)}, v{vXr} offset:{tp*1024}")
        for t4 in range(2):
            r.append(f"ds_read_b64_tr_b16 {vr(wf(st,0)+2*t4,2)}, v{vWr} offset:{tp*2048+t4*1024}")
        r.append(f"ds_read_b128 {vr(xf(st,1),4)}, v{vXr} offset:{4096+tp*1024}")
        for t4 in range(2):
            r.append(f"ds_read_b64_tr_b16 {vr(wf(st,1)+2*t4,2)}, v{vWr2} offset:{tp*2048+t4*1024}")
        return r

    def mf(st):
        return [f"v_mfma_f32_32x32x16_bf16 {vr(acc(ct,tt),16)}, {vr(wf(st,ct),4)}, {vr(xf(st,tt),4)}, {vr(acc(ct,tt),16)}"
                for ct in range(2) for tt in range(2)]
    stamp(a, 1)
    a(f"s_waitcnt vmcnt({4*(K3_NS-2)})")
    a("s_barrier")
    stamp(a, 2)
    for r in reads(0, 0):
        a(r)
    sJ = 38
    a(f"s_mov_b32 s{sJ}, 0")
    a(".p2align 6")
    a.label("K3_LOOP")
    m = mf(0); r = reads(1, 1)
    a("s_waitcnt lgkmcnt(0)")
    a(m[0]); a(r[0]); a(r[1]); a(r[2])
    a(m[1]); a(r[3]); a(r[4]); a(r[5])
    a(m[2])
    a(f"s_add_u32 s{sRd}, s{sRd}, 32768")
    a(f"s_cmp_eq_u32 s{sRd}, {K3_NS*32768}")
    a(f"s_cselect_b32 s{sRd}, 0, s{sRd}")
    a(m[3])
    a(f"v_add_u32 v{vXr}, s{sRd}, v{vXb}")
    a(f"v_add_u32 v{vWr}, s{sRd}, v{vWb}")
    a(f"v_xor_b32 v{vWr2}, 64, v{vWr}")
    m = mf(1); r = reads(0, 0)
    a(f"s_waitcnt vmcnt({4*(K3_NS-3)}) lgkmcnt(0)")
    a("s_barrier")
    g = dma_stage(None)
    a(m[0]); a(r[0]); a(r[1]); a(r[2])
    a(m[1]); a(r[3]); a(r[4]); a(r[5])
    a(m[2])
    for x in g[0] + g[1]:
        a(x)
    a(m[3])
    for x in g[2] + g[3] + g[4]:
        a(x)
    a(f"s_add_u32 s{sJ}, s{sJ}, 1")
    a(f"s_cmp_lt_u32 s{sJ}, 16")
    a("s_cbranch_scc1 K3_LOOP")
    stamp(a, 3)
    a("s_waitcnt vmcnt(0) lgkmcnt(0)")
    a("s_barrier")
    a(f"s_and_b32 s{sT0}, s{sWave}, 3")
    a(f"s_lshl_b32 s{sT0}, s{sT0}, 14")
    a(f"s_lshl_b32 s{sT1}, s{sKh}, 13")
    a(f"s_add_u32 s{sT2}, s{sT0}, s{sT1}")
    a(f"v_add_u32 v{vT}, s{sT2}, v{vL16}")
    a(f"s_xor_b32 s{sT2}, s{sT2}, 8192")
    a(f"v_add_u32 v{vT+1}, s{sT2}, v{vL16}")
    a(f"s_cmp_eq_u32 s{sKh}, 0")
    a("s_cbranch_scc1 K3_KH0")
    for i in range(8):
        a(f"ds_write_b128 v{vT}, {vr(ACC+4*i,4)} offset:{i*1024}")
    for i in range(32):
        a(f"v_mov_b32 v{ACC+i}, v{ACC+32+i}")
    a("s_branch K3_X")
    a.label("K3_KH0")
    for i in range(8):
        a(f"ds_write_b128 v{vT}, {vr(ACC+32+4*i,4)} offset:{i*1024}")
    a.label("K3_X")
    a("s_waitcnt lgkmcnt(0)")
    a("s_barrier")
    for i in range(8):
        a(f"ds_read_b128 {vr(ACC+32+4*i,4)}, v{vT+1} offset:{i*1024}")
    a(f"v_and_b32 v{vT+2}, 31, v{vLane}")
    a(f"v_lshlrev_b32 v{vT+2}, 12, v{vT+2}")
    a(f"v_lshrrev_b32 v{vT+3}, 5, v{vLane}")
    a(f"v_lshl_add_u32 v{vT+2}, v{vT+3}, 5, v{vT+2}")
    a(f"s_lshl_b32 s{sT0}, s{sMb}, 19")
    a(f"s_lshl_b32 s{sT1}, s{sWm}, 18")
    a(f"s_add_u32 s{sT0}, s{sT0}, s{sT1}")
    a(f"s_lshl_b32 s{sT1}, s{sProb}, 11")
    a(f"s_add_u32 s{sT0}, s{sT0}, s{sT1}")
    a(f"s_lshl_b32 s{sT1}, s{sNb}, 8")
    a(f"s_add_u32 s{sT0}, s{sT0}, s{sT1}")
    a(f"s_lshl_b32 s{sT1}, s{sWn}, 7")
    a(f"s_add_u32 s{sT0}, s{sT0}, s{sT1}")
    a(f"s_lshl_b32 s{sT1}, s{sKh}, 6")
    a(f"s_add_u32 s{sT0}, s{sT0}, s{sT1}")
    a(f"s_add_u32 s{sT1}, s{sT0}, 131072")
    a("s_waitcnt lgkmcnt(0)")
    for i in range(32):
        a(f"v_add_f32 v{ACC+i}, v{ACC+i}, v{ACC+32+i}")
    for i in range(16):
        a(f"v_cvt_pk_bf16_f32 v{FR+i}, v{ACC+2*i}, v{ACC+2*i+1}")
    for tt in range(2):
        so = sT0 if tt == 0 else sT1
        a(f"buffer_store_dwordx4 {vr(FR+tt*8,4)}, v{vT+2}, s[{SO}:{SO+3}], s{so} offen")
        a(f"buffer_store_dwordx4 {vr(FR+tt*8+4,4)}, v{vT+2}, s[{SO}:{SO+3}], s{so} offen offset:16")
    if STAMP:
        stamp(a, 4)
        a("s_waitcnt vmcnt(0)")
        stamp(a, 5); stamp(a, 7, True)
        stamp_store(a, sWave, 2, 16)
    a.label("K3_END")
    a("s_endpgm")
    kernel_desc(a, name, 112)
    return name, (256, 1, 1), (512, 1, 1), K3_LDS


HEADER = open("cdna_kernels/" + NAME + ".s.ref").read().split("; Override launch")[0]


def build(kernels=("k1", "k2", "k3")):
    a = Asm()
    launches = []
    gens = {"k1": gen_k1, "k2": gen_k2, "k3": gen_k3}
    for k in kernels:
        launches.append(gens[k](a))
    hdr = HEADER
    for (n, g, b, l) in launches:
        hdr += f"; @launch kernel={n} grid=({g[0]},{g[1]},{g[2]}) block=({b[0]},{b[1]},{b[2]}) lds={l}\n"
    hdr += '.amdgcn_target "amdgcn-amd-amdhsa--gfx950"\n'
    return hdr + a.text()


if __name__ == "__main__":
    out = sys.argv[1] if len(sys.argv) > 1 else "cdna_kernels/" + NAME + ".s"
    open(out, "w").write(build())
    print("wrote", out)
```

```python
import sys, math

NAME = "concat_heads__softmax_full_mha__linear_kernel_hedgehog__prompt"

QA_OFF = 0
KVA_OFF = 4 << 20
QB_OFF = 12 << 20
KVP_OFF = 16 << 20
ZP_OFF = 18 << 20
O_OFF = 20 << 20
WS_USED = 28 << 20

LOG2E = 1.4426950408889634
QSCALE = (32 ** -0.5) * LOG2E


def f32hex(x):
    import struct
    return "0x%08x" % struct.unpack("<I", struct.pack("<f", x))[0]


class Asm:
    def __init__(self):
        self.lines = []

    def __call__(self, s):
        self.lines.append("    " + s)

    def label(self, l):
        self.lines.append(l + ":")

    def c(self, s):
        self.lines.append("    ; " + s)

    def raw(self, s):
        self.lines.append(s)

    def text(self):
        return "\n".join(self.lines) + "\n"


def vr(a, n=1):
    return f"v{a}" if n == 1 else f"v[{a}:{a+n-1}]"


def sr(a, n=1):
    return f"s{a}" if n == 1 else f"s[{a}:{a+n-1}]"


def kernel_begin(a, name):
    a.raw(".text")
    a.raw(f".globl {name}")
    a.raw(".p2align 8")
    a.raw(f".type {name},@function")
    a.label(name)


def kernel_desc(a, name, nvgpr, nsgpr=100):
    nv = (nvgpr + 3) // 4 * 4
    a.raw('.section .rodata,"a"')
    a.raw(".p2align 6")
    a.raw(f".amdhsa_kernel {name}")
    a.raw(f"  .amdhsa_next_free_vgpr {nv}")
    a.raw(f"  .amdhsa_next_free_sgpr {nsgpr}")
    a.raw(f"  .amdhsa_accum_offset {nv}")
    a.raw("  .amdhsa_group_segment_fixed_size 0")
    a.raw("  .amdhsa_kernarg_size 80")
    a.raw("  .amdhsa_user_sgpr_count 2")
    a.raw("  .amdhsa_user_sgpr_kernarg_segment_ptr 1")
    a.raw("  .amdhsa_system_sgpr_workgroup_id_x 1")
    a.raw(".end_amdhsa_kernel")


def srd(a, d, base_lo, base_hi, nbytes):
    a(f"s_mov_b32 s{d}, s{base_lo}")
    a(f"s_mov_b32 s{d+1}, s{base_hi}")
    a(f"s_mov_b32 s{d+2}, {nbytes}")
    a(f"s_mov_b32 s{d+3}, 0x00020000")


import os
NTX = os.environ.get("NTX", "nt")
NTW = os.environ.get("NTW", "nt")
NTO = os.environ.get("NTO", "")
STAMP = int(os.environ.get("STAMP", "0"))
STAMP_OFF = 64 << 20
S_ST = 72


def stamp(a, i, real=False):
    if STAMP:
        a(f"{'s_memrealtime' if real else 's_memtime'} s[{S_ST+2*i}:{S_ST+2*i+1}]")


def stamp_store(a, sWave, kidx, vtmp):
    if not STAMP:
        return
    a("s_load_dwordx2 s[92:93], s[0:1], 72")
    a("s_waitcnt lgkmcnt(0)")
    a(f"s_add_u32 s92, s92, {STAMP_OFF + kidx*(1<<20)}")
    a("s_addc_u32 s93, s93, 0")
    a("s_mov_b32 s94, 0x100000")
    a("s_mov_b32 s95, 0x00020000")
    a("s_lshl_b32 s96, s2, 4")
    a(f"s_add_u32 s96, s96, s{sWave}")
    a("s_lshl_b32 s96, s96, 5")
    for i in range(8):
        a(f"v_mov_b32 v{vtmp+i}, s{S_ST+2*i}")
    a(f"v_mov_b32 v{vtmp+8}, 0")
    a("s_mov_b64 exec, 1")
    a(f"buffer_store_dwordx4 {vr(vtmp,4)}, v{vtmp+8}, s[92:95], s96 offen")
    a(f"buffer_store_dwordx4 {vr(vtmp+4,4)}, v{vtmp+8}, s[92:95], s96 offen offset:16")
    a("s_mov_b64 exec, -1")


def mfma32(a, d, x, y, c):
    cs = "0" if c is None else vr(c, 16)
    a(f"v_mfma_f32_32x32x16_bf16 {vr(d,16)}, {vr(x,4)}, {vr(y,4)}, {cs}")


def mfma16(a, d, x, y, c):
    cs = "0" if c is None else vr(c, 4)
    a(f"v_mfma_f32_16x16x32_bf16 {vr(d,4)}, {vr(x,4)}, {vr(y,4)}, {cs}")


K1_XB = 0
K1_WB = 98304
K1_PHI = 159744
K1_LDS = 163840


def softmax_pm(a, S, E, T, pk_out):
    assert S % 2 == 0 and E % 2 == 0 and T % 2 == 0
    L2 = f"s[{S_LOG2E}:{S_LOG2E+1}]"
    mx, mn, t0, t1 = T, T + 1, T + 2, T + 3
    a(f"v_max3_f32 v{mx}, v{S}, v{S+1}, v{S+2}")
    a(f"v_min3_f32 v{mn}, v{S}, v{S+1}, v{S+2}")
    for i in range(3, 15, 2):
        a(f"v_max3_f32 v{mx}, v{mx}, v{S+i}, v{S+i+1}")
        a(f"v_min3_f32 v{mn}, v{mn}, v{S+i}, v{S+i+1}")
    a(f"v_max_f32 v{mx}, v{mx}, v{S+15}")
    a(f"v_min_f32 v{mn}, v{mn}, v{S+15}")
    a(f"v_mov_b32 v{t0}, v{mx}")
    a(f"v_mov_b32 v{t1}, v{mn}")
    a("s_nop 1")
    a(f"v_permlane32_swap_b32 v{mx}, v{t0}")
    a(f"v_permlane32_swap_b32 v{mn}, v{t1}")
    a("s_nop 1")
    a(f"v_max_f32 v{mx}, v{mx}, v{t0}")
    a(f"v_min_f32 v{mn}, v{mn}, v{t1}")
    C = T + 4
    if not os.environ.get("PKSM"):
        sp, sn, sp2, sn2 = T, T + 1, T + 2, T + 3
        a(f"v_mul_f32 v{C}, s{S_LOG2E}, v{mx}")
        a(f"v_mul_f32 v{C+1}, s{S_LOG2E}, v{mn}")
        for i in range(16):
            a(f"v_fma_f32 v{E+i}, v{S+i}, s{S_LOG2E}, -v{C}")
            a(f"v_fma_f32 v{E+16+i}, -v{S+i}, s{S_LOG2E}, v{C+1}")
        for i in range(32):
            a(f"v_exp_f32 v{E+i}, v{E+i}")
        a(f"v_add_f32 v{sp}, v{E}, v{E+1}")
        a(f"v_add_f32 v{sn}, v{E+16}, v{E+17}")
        a(f"v_add_f32 v{sp2}, v{E+2}, v{E+3}")
        a(f"v_add_f32 v{sn2}, v{E+18}, v{E+19}")
        for i in range(4, 16, 2):
            a(f"v_add_f32 v{sp}, v{sp}, v{E+i}")
            a(f"v_add_f32 v{sn}, v{sn}, v{E+16+i}")
            a(f"v_add_f32 v{sp2}, v{sp2}, v{E+i+1}")
            a(f"v_add_f32 v{sn2}, v{sn2}, v{E+17+i}")
        a(f"v_add_f32 v{C}, v{sp}, v{sp2}")
        a(f"v_add_f32 v{C+1}, v{sn}, v{sn2}")
        a(f"v_mov_b32 v{T+6}, v{C}")
        a(f"v_mov_b32 v{T+7}, v{C+1}")
        a("s_nop 1")
        a(f"v_permlane32_swap_b32 v{C}, v{T+6}")
        a(f"v_permlane32_swap_b32 v{C+1}, v{T+7}")
        a("s_nop 1")
        a(f"v_add_f32 v{C}, v{C}, v{T+6}")
        a(f"v_add_f32 v{C+1}, v{C+1}, v{T+7}")
        a(f"v_rcp_f32 v{C}, v{C}")
        a(f"v_rcp_f32 v{C+1}, v{C+1}")
        a("s_nop 0")
        for i in range(16):
            a(f"v_mul_f32 v{E+i}, v{E+i}, v{C}")
            a(f"v_mul_f32 v{E+16+i}, v{E+16+i}, v{C+1}")
        for i in range(16):
            a(f"v_cvt_pk_bf16_f32 v{pk_out+i}, v{E+2*i}, v{E+2*i+1}")
        return
    a(f"v_pk_mul_f32 {vr(C,2)}, {vr(T,2)}, {L2} neg_lo:[1,0]")
    for i in range(8):
        a(f"v_pk_fma_f32 {vr(E+2*i,2)}, {vr(S+2*i,2)}, {L2}, {vr(C,2)} op_sel_hi:[1,1,0]")
        a(f"v_pk_fma_f32 {vr(E+16+2*i,2)}, {vr(S+2*i,2)}, {L2}, {vr(C,2)} op_sel:[0,0,1] op_sel_hi:[1,1,1] neg_lo:[1,0,0] neg_hi:[1,0,0]")
    for i in range(32):
        a(f"v_exp_f32 v{E+i}, v{E+i}")
    a(f"v_pk_add_f32 {vr(T,2)}, {vr(E,2)}, {vr(E+2,2)}")
    a(f"v_pk_add_f32 {vr(T+2,2)}, {vr(E+16,2)}, {vr(E+18,2)}")
    for i in range(2, 8):
        a(f"v_pk_add_f32 {vr(T,2)}, {vr(T,2)}, {vr(E+2*i,2)}")
        a(f"v_pk_add_f32 {vr(T+2,2)}, {vr(T+2,2)}, {vr(E+16+2*i,2)}")
    a(f"v_add_f32 v{C}, v{T}, v{T+1}")
    a(f"v_add_f32 v{C+1}, v{T+2}, v{T+3}")
    a(f"v_mov_b32 v{T+6}, v{C}")
    a(f"v_mov_b32 v{T+7}, v{C+1}")
    a("s_nop 1")
    a(f"v_permlane32_swap_b32 v{C}, v{T+6}")
    a(f"v_permlane32_swap_b32 v{C+1}, v{T+7}")
    a("s_nop 1")
    a(f"v_pk_add_f32 {vr(C,2)}, {vr(C,2)}, {vr(T+6,2)}")
    a(f"v_rcp_f32 v{C}, v{C}")
    a(f"v_rcp_f32 v{C+1}, v{C+1}")
    a("s_nop 0")
    for i in range(8):
        a(f"v_pk_mul_f32 {vr(E+2*i,2)}, {vr(E+2*i,2)}, {vr(C,2)} op_sel_hi:[1,0]")
        a(f"v_pk_mul_f32 {vr(E+16+2*i,2)}, {vr(E+16+2*i,2)}, {vr(C,2)} op_sel:[0,1] op_sel_hi:[1,1]")
    for i in range(16):
        a(f"v_cvt_pk_bf16_f32 v{pk_out+i}, v{E+2*i}, v{E+2*i+1}")


S_LOG2E = 90
S_NLOG2E = 91


def gen_k1(a):
    name = "k1_qkv_kernel"
    kernel_begin(a, name)
    SX, SW, SWS, SPHI = 4, 8, 12, 16
    sProb, sMblk, sHp, sWave, sWm, sWn = 20, 21, 22, 23, 24, 25
    sI = 26
    sXk = 28
    sXr, sXw = 32, 33
    sWr, sWp1 = 34, 35
    sWo = 37
    sWl = 40
    sT0, sT1, sT2, sT3 = 44, 45, 46, 47
    sPtr = 48
    vLane = 1
    vXd, vWd = 2, 3
    vXb, vWb = 4, 5
    vXr = [6, 7, 8, 9]
    vWr = 10
    vT = 11
    ACC = 16
    FR = 112
    vPF = 152
    NREC_W = 6291456

    def acc(s, tt): return ACC + (s * 2 + tt) * 16
    def xf(st, tt): return FR + st * 20 + tt * 4
    def wf(st, s): return FR + st * 20 + 8 + s * 4

    a("s_cmp_ge_u32 s2, 256")
    a("s_cbranch_scc1 K1_END")
    a(f"s_load_dwordx4 s[{sPtr}:{sPtr+3}], s[0:1], 0")
    a(f"s_load_dwordx4 s[{sPtr+4}:{sPtr+7}], s[0:1], 24")
    a(f"s_load_dwordx2 s[{sPtr+8}:{sPtr+9}], s[0:1], 40")
    a(f"s_load_dwordx2 s[{sPtr+10}:{sPtr+11}], s[0:1], 72")
    if STAMP:
        for i in range(16):
            a(f"s_mov_b32 s{S_ST+i}, 0")
    stamp(a, 0); stamp(a, 6, True)
    a(f"v_and_b32 v{vLane}, 63, v0")
    a(f"v_lshrrev_b32 v{vT}, 6, v0")
    a(f"s_and_b32 s{sT0}, s2, 7")
    a(f"s_lshr_b32 s{sT1}, s2, 3")
    a(f"v_readfirstlane_b32 s{sWave}, v{vT}")
    a(f"s_lshr_b32 s{sProb}, s{sT0}, 2")
    a(f"s_bfe_u32 s{sT2}, s{sT0}, 0x10001")
    a(f"s_lshl_b32 s{sT2}, s{sT2}, 2")
    a(f"s_and_b32 s{sT3}, s{sT1}, 3")
    a(f"s_add_u32 s{sMblk}, s{sT2}, s{sT3}")
    a(f"s_and_b32 s{sT2}, s{sT0}, 1")
    a(f"s_lshl_b32 s{sT2}, s{sT2}, 3")
    a(f"s_lshr_b32 s{sT3}, s{sT1}, 2")
    a(f"s_add_u32 s{sHp}, s{sT2}, s{sT3}")
    a(f"s_and_b32 s{sWm}, s{sWave}, 3")
    a(f"s_lshr_b32 s{sWn}, s{sWave}, 2")
    a(f"v_lshrrev_b32 v{vT}, 3, v{vLane}")
    a(f"s_lshl_b32 s{sT0}, s{sWm}, 3")
    a(f"v_add_u32 v{vT+1}, s{sT0}, v{vT}")
    a(f"v_bfe_u32 v{vT+2}, v{vT+1}, 1, 3")
    a(f"v_and_b32 v{vT+3}, 7, v{vLane}")
    a(f"v_xor_b32 v{vT+2}, v{vT+2}, v{vT+3}")
    a(f"v_lshlrev_b32 v{vT+2}, 4, v{vT+2}")
    a(f"v_lshl_add_u32 v{vXd}, v{vT+1}, 11, v{vT+2}")
    a(f"v_bfe_u32 v{vT+2}, v{vT}, 1, 1")
    a(f"v_lshlrev_b32 v{vT+2}, 2, v{vT+2}")
    a(f"v_xor_b32 v{vT+2}, v{vT+2}, v{vT+3}")
    a(f"v_lshlrev_b32 v{vT+2}, 4, v{vT+2}")
    a(f"v_mul_u32_u24 v{vWd}, 6144, v{vT}")
    a(f"v_add_u32 v{vWd}, v{vWd}, v{vT+2}")
    a(f"s_mul_i32 s{sWo}, s{sWm}, 49152")
    sHs = [68, 69, 70]
    sWd = [29, 30, 31]
    SPREAD = os.environ.get("SPREAD", "1") == "1"
    for sg, (da, db) in enumerate(((0, 4), (3, 0), (5, 0))):
        if not SPREAD:
            da = db = 0
        a(f"s_cmp_eq_u32 s{sProb}, 0")
        a(f"s_cselect_b32 s{sT0}, {da}, {db}")
        a(f"s_add_u32 s{sT0}, s{sT0}, s{sHp}")
        a(f"s_and_b32 s{sT0}, s{sT0}, 7")
        a(f"s_and_b32 s{sT1}, s{sHp}, 8")
        a(f"s_or_b32 s{sHs[sg]}, s{sT0}, s{sT1}")
        a(f"s_lshl_b32 s{sWd[sg]}, s{sHs[sg]}, 7")
        a(f"s_add_u32 s{sWd[sg]}, s{sWd[sg]}, {sg*2048}")
    a(f"s_lshl_b32 s{sXw}, s{sWm}, 10")
    a(f"s_add_u32 s{sWl}, s{sXw}, {K1_WB}")
    sWc = 42
    ROT = os.environ.get("ROT", "0")
    if ROT == "0":
        a(f"s_mov_b32 s{sT0}, 0")
    elif ROT == "1":
        a(f"s_lshl_b32 s{sT0}, s{sProb}, 3")
        a(f"s_add_u32 s{sT0}, s{sT0}, s{sMblk}")
    elif ROT == "4":
        a(f"s_and_b32 s{sT0}, s{sMblk}, 3")
        a(f"s_lshl_b32 s{sT0}, s{sT0}, 2")
        a(f"s_lshr_b32 s{sT1}, s{sMblk}, 2")
        a(f"s_add_u32 s{sT0}, s{sT0}, s{sT1}")
        a(f"s_lshl_b32 s{sT1}, s{sProb}, 1")
        a(f"s_add_u32 s{sT0}, s{sT0}, s{sT1}")
    elif ROT == "2":
        a(f"s_and_b32 s{sT0}, s{sMblk}, 3")
        a(f"s_lshl_b32 s{sT0}, s{sT0}, 1")
        a(f"s_lshr_b32 s{sT1}, s{sMblk}, 2")
        a(f"s_add_u32 s{sT0}, s{sT0}, s{sT1}")
        a(f"s_lshl_b32 s{sT1}, s{sProb}, 3")
        a(f"s_add_u32 s{sT0}, s{sT0}, s{sT1}")
    elif ROT == "x":
        a(f"s_and_b32 s{sT0}, s2, 7")
        a(f"s_lshl_b32 s{sT0}, s{sT0}, 1")
    a(f"s_lshl_b32 s{sXk}, s{sT0}, 7")
    a(f"s_mul_i32 s{sT0}, s{sT0}, {2*196608}")
    a(f"s_add_u32 s{sWo}, s{sWo}, s{sT0}")
    a(f"s_mov_b32 s{sWc}, 32")
    a("s_waitcnt lgkmcnt(0)")
    a(f"s_cmp_eq_u32 s{sProb}, 0")
    a(f"s_cselect_b32 s{sT0}, s{sPtr}, s{sPtr+4}")
    a(f"s_cselect_b32 s{sT1}, s{sPtr+1}, s{sPtr+5}")
    a(f"s_cselect_b32 s{sT2}, s{sPtr+2}, s{sPtr+6}")
    a(f"s_cselect_b32 s{sT3}, s{sPtr+3}, s{sPtr+7}")
    a(f"s_lshl_b32 s{sI}, s{sMblk}, 19")
    a(f"s_add_u32 s{sT0}, s{sT0}, s{sI}")
    a(f"s_addc_u32 s{sT1}, s{sT1}, 0")
    srd(a, SX, sT0, sT1, 524288)
    srd(a, SW, sT2, sT3, NREC_W)
    srd(a, SWS, sPtr + 10, sPtr + 11, WS_USED)
    srd(a, SPHI, sPtr + 8, sPtr + 9, 65536)

    def g_x(half):
        g = []
        for q in range(4 * half, 4 * half + 4):
            g.append([f"s_add_u32 m0, s{sXw}, {K1_XB + q*4096}",
                      f"s_add_u32 s{sT0}, s{sXk}, {q*65536}",
                      f"s_min_u32 s{sT0}, s{sT0}, 524288",
                      f"buffer_load_dwordx4 v{vXd}, s[{SX}:{SX+3}], s{sT0} offen {NTX} lds"])
        return g

    def g_w(slot):
        g = []
        g.append([f"s_add_u32 s{sT1}, s{sWl}, {slot}",
                  f"s_cmp_gt_i32 s{sWc}, 0",
                  f"s_cselect_b32 s{sT2}, s{sWo}, {NREC_W}",
                  f"s_mov_b32 m0, s{sT1}",
                  f"s_add_u32 s{sT3}, s{sT2}, s{sWd[0]}",
                  f"s_min_u32 s{sT3}, s{sT3}, {NREC_W}",
                  f"buffer_load_dwordx4 v{vWd}, s[{SW}:{SW+3}], s{sT3} offen {NTW} lds"])
        g.append([f"s_add_u32 m0, s{sT1}, 4096",
                  f"s_add_u32 s{sT3}, s{sT2}, s{sWd[1]}",
                  f"s_min_u32 s{sT3}, s{sT3}, {NREC_W}",
                  f"buffer_load_dwordx4 v{vWd}, s[{SW}:{SW+3}], s{sT3} offen {NTW} lds"])
        g.append([f"s_add_u32 m0, s{sT1}, 8192",
                  f"s_add_u32 s{sT3}, s{sT2}, s{sWd[2]}",
                  f"s_min_u32 s{sT3}, s{sT3}, {NREC_W}",
                  f"buffer_load_dwordx4 v{vWd}, s[{SW}:{SW+3}], s{sT3} offen {NTW} lds",
                  f"s_sub_u32 s{sWc}, s{sWc}, 1",
                  f"s_add_u32 s{sWo}, s{sWo}, 196608",
                  f"s_sub_u32 s{sT3}, s{sWo}, {NREC_W}",
                  f"s_cselect_b32 s{sWo}, s{sWo}, s{sT3}"])
        return g

    def emit(groups):
        for g in groups:
            for x in g:
                a(x)

    a(f"s_cmp_ge_u32 s{sWave}, 4")
    a("s_cbranch_scc1 K1_PF_PRO")
    emit(g_w(0)); emit(g_x(0))
    emit(g_x(1)); emit(g_w(12288))
    a(f"s_add_u32 s{sXk}, s{sXk}, 128")
    a(f"s_and_b32 s{sXk}, s{sXk}, 2047")
    a(f"s_add_u32 s{sXw}, s{sXw}, 32768")
    emit(g_w(2 * 12288)); emit(g_x(0))
    emit(g_x(1)); emit(g_w(3 * 12288))
    a(f"s_add_u32 s{sXk}, s{sXk}, 128")
    a(f"s_and_b32 s{sXk}, s{sXk}, 2047")
    a(f"s_add_u32 s{sXw}, s{sXw}, 32768")
    a("s_branch K1_PRO2")
    a.label("K1_PF_PRO")
    vPx, vPw = vXd, vWd
    a(f"v_lshrrev_b32 v{vT}, 2, v{vLane}")
    a(f"s_and_b32 s{sT0}, s{sHp}, 7")
    a(f"s_lshl_b32 s{sT0}, s{sT0}, 5")
    a(f"v_add_u32 v{vT}, s{sT0}, v{vT}")
    a(f"v_lshlrev_b32 v{vPx}, 11, v{vT}")
    a(f"v_and_b32 v{vT}, 3, v{vLane}")
    a(f"v_lshl_add_u32 v{vPx}, v{vT}, 7, v{vPx}")
    a(f"s_lshl_b32 s{sT0}, s{sWm}, 9")
    a(f"v_add_u32 v{vPx}, s{sT0}, v{vPx}")
    a(f"v_lshrrev_b32 v{vT}, 3, v{vLane}")
    a(f"s_lshr_b32 s{sT0}, s2, 3")
    a(f"s_lshl_b32 s{sT0}, s{sT0}, 3")
    a(f"s_mul_i32 s{sT1}, s{sWm}, 768")
    a(f"s_add_u32 s{sT0}, s{sT0}, s{sT1}")
    a(f"v_add_u32 v{vT}, s{sT0}, v{vT}")
    a(f"v_lshlrev_b32 v{vPw}, 11, v{vT}")
    a(f"v_and_b32 v{vT}, 7, v{vLane}")
    a(f"v_lshl_add_u32 v{vPw}, v{vT}, 7, v{vPw}")
    a(f"s_lshr_b32 s{sT1}, s{sHp}, 3")
    a(f"s_lshl_b32 s{sT1}, s{sT1}, 10")
    a(f"v_add_u32 v{vPw}, s{sT1}, v{vPw}")
    a(f"v_lshlrev_b32 v{vT}, 4, v{vLane}")
    a(f"s_lshl_b32 s{sT0}, s{sHp}, 12")
    a(f"s_lshl_b32 s{sT1}, s{sWm}, 10")
    a(f"s_add_u32 s{sT0}, s{sT0}, s{sT1}")
    a(f"s_add_u32 m0, s{sT1}, {K1_PHI}")
    a("s_nop 0")
    a(f"buffer_load_dwordx4 v{vT}, s[{SPHI}:{SPHI+3}], s{sT0} offen lds")

    NTP = os.environ.get("NTP", "nt")
    def pf_issue():
        r = []
        r.append(f"buffer_load_dword v{vPF}, v{vPw}, s[{SW}:{SW+3}], 0 offen {NTP}")
        r.append(f"buffer_load_dword v{vPF+1}, v{vPx}, s[{SX}:{SX+3}], 0 offen {NTP}")
        r.append(f"s_mov_b32 s{sT0}, 32768")
        r.append(f"buffer_load_dword v{vPF+4}, v{vPx}, s[{SX}:{SX+3}], s{sT0} offen {NTP}")
        r.append(f"s_mov_b32 s{sT0}, 524288")
        r.append(f"buffer_load_dword v{vPF+2}, v{vPw}, s[{SW}:{SW+3}], s{sT0} offen {NTP}")
        r.append(f"s_mov_b32 s{sT0}, 1048576")
        r.append(f"buffer_load_dword v{vPF+3}, v{vPw}, s[{SW}:{SW+3}], s{sT0} offen {NTP}")
        return r
    PF_START = [int(x) for x in os.environ.get("PF_START", "-1,-1,1,4").split(",")]
    sPfI = 41
    a(f"s_mov_b32 s{sPfI}, {PF_START[0] & 0xffffffff}")
    for u in range(1, 4):
        a(f"s_cmp_eq_u32 s{sWm}, {u}")
        a(f"s_cselect_b32 s{sPfI}, {PF_START[u] & 0xffffffff}, s{sPfI}")
    a(f"s_cmp_lg_u32 s{sPfI}, -1")
    a("s_cbranch_scc1 K1_PRO2")
    if not not os.environ.get("PF"):
        for x in pf_issue():
            a(x)
    a.label("K1_PRO2")
    a(f"v_and_b32 v{vT}, 31, v{vLane}")
    a(f"v_lshrrev_b32 v{vT+1}, 5, v{vLane}")
    a(f"v_bfe_u32 v{vT+2}, v{vT}, 1, 3")
    a(f"v_xor_b32 v{vT+2}, v{vT+2}, v{vT+1}")
    a(f"v_lshlrev_b32 v{vT+2}, 4, v{vT+2}")
    a(f"v_lshl_add_u32 v{vXb}, v{vT}, 7, v{vT+2}")
    a(f"s_lshl_b32 s{sT0}, s{sWm}, 13")
    a(f"v_add_u32 v{vXb}, s{sT0}, v{vXb}")
    a(f"v_bfe_u32 v{vT}, v{vLane}, 2, 2")
    a(f"v_lshl_add_u32 v{vT+2}, v{vT+1}, 3, v{vT}")
    a(f"v_lshlrev_b32 v{vWb}, 7, v{vT+2}")
    a(f"v_bfe_u32 v{vT+2}, v{vLane}, 4, 1")
    a(f"v_lshlrev_b32 v{vT+2}, 1, v{vT+2}")
    a(f"v_bfe_u32 v{vT+3}, v{vLane}, 1, 1")
    a(f"v_add_u32 v{vT+2}, v{vT+2}, v{vT+3}")
    a(f"s_lshl_b32 s{sT0}, s{sWn}, 2")
    a(f"v_add_u32 v{vT+2}, s{sT0}, v{vT+2}")
    a(f"v_lshrrev_b32 v{vT+3}, 1, v{vT}")
    a(f"v_lshlrev_b32 v{vT+3}, 2, v{vT+3}")
    a(f"v_xor_b32 v{vT+2}, v{vT+2}, v{vT+3}")
    a(f"v_lshl_add_u32 v{vWb}, v{vT+2}, 4, v{vWb}")
    a(f"v_and_b32 v{vT+2}, 1, v{vLane}")
    a(f"v_lshl_add_u32 v{vWb}, v{vT+2}, 3, v{vWb}")
    a(f"v_add_u32 v{vWb}, {K1_WB}, v{vWb}")
    for i in range(96):
        a(f"v_mov_b32 v{ACC+i}, 0")
    a(f"s_mov_b32 s{sXr}, 0")
    a(f"s_mov_b32 s{sWr}, 0")
    a(f"s_mov_b32 s{sWp1}, {4*12288}")
    for ks in range(4):
        if ks == 0:
            a(f"v_mov_b32 v{vXr[0]}, v{vXb}")
        else:
            a(f"v_xor_b32 v{vXr[ks]}, {32*ks}, v{vXb}")
    a(f"v_mov_b32 v{vWr}, v{vWb}")
    a(f"s_mov_b32 s{sI}, 0")

    def reads(st, ks, kh):
        r = []
        r.append(f"ds_read_b128 {vr(xf(st,0),4)}, v{vXr[ks]}")
        for t4 in range(2):
            r.append(f"ds_read_b64_tr_b16 {vr(wf(st,0)+2*t4,2)}, v{vWr} offset:{0*4096+kh*2048+t4*512}")
        r.append(f"ds_read_b128 {vr(xf(st,1),4)}, v{vXr[ks]} offset:4096")
        for s in (1, 2):
            for t4 in range(2):
                r.append(f"ds_read_b64_tr_b16 {vr(wf(st,s)+2*t4,2)}, v{vWr} offset:{s*4096+kh*2048+t4*512}")
        return r

    def mfmas(st):
        m = []
        for s in range(3):
            for tt in range(2):
                if s < 2:
                    m.append(f"v_mfma_f32_32x32x16_bf16 {vr(acc(s,tt),16)}, {vr(wf(st,s),4)}, {vr(xf(st,tt),4)}, {vr(acc(s,tt),16)}")
                else:
                    m.append(f"v_mfma_f32_32x32x16_bf16 {vr(acc(s,tt),16)}, {vr(xf(st,tt),4)}, {vr(wf(st,s),4)}, {vr(acc(s,tt),16)}")
        return m

    def adv_w_slot():
        return [f"s_mov_b32 s{sWp1}, s{sWr}",
                f"s_add_u32 s{sWr}, s{sWr}, 12288",
                f"s_cmp_eq_u32 s{sWr}, {5*12288}",
                f"s_cselect_b32 s{sWr}, 0, s{sWr}",
                f"v_add_u32 v{vWr}, s{sWr}, v{vWb}"]

    def emit_substep(st, rd, pre, dmas, post):
        m = mfmas(st)
        for x in pre:
            a(x)
        a(m[0]); a(rd[0]); a(rd[1]); a(rd[2])
        a(m[1]); a(rd[3]); a(rd[4]); a(rd[5])
        a(m[2]); a(rd[6]); a(rd[7])
        k = 0
        for mi in range(2, 6):
            if mi > 2:
                a(m[mi])
            if k < len(dmas):
                for x in dmas[k]:
                    a(x)
                k += 1
        assert k == len(dmas)
        for x in post:
            a(x)

    def loop(role):
        ld = role == "L"
        lab = f"K1_LOOP_{role}"
        vm = "vmcnt(14) " if ld else ""
        stamp(a, 1)
        if ld:
            a("s_waitcnt vmcnt(14)")
        a("s_barrier")
        stamp(a, 2)
        for r in reads(0, 0, 0):
            a(r)
        if ld:
            emit(g_w(f"s{sWp1}"))
        a(".p2align 6")
        a.label(lab)
        pre = ["s_waitcnt lgkmcnt(0)"]
        if not ld and not not os.environ.get("PF"):
            pre = [f"s_cmp_lg_u32 s{sPfI}, s{sI}", f"s_cbranch_scc1 {lab}_NP"] + pf_issue() + [f"{lab}_NP:"] + pre
        emit_substep(0, reads(1, 1, 1), pre, g_x(0) if ld else [], [])
        pre = adv_w_slot() + [f"s_waitcnt {vm}lgkmcnt(0)", "s_barrier"]
        emit_substep(1, reads(0, 2, 0), pre, g_w(f"s{sWp1}") if ld else [], [])
        post = [f"s_lshl_b32 s{sT0}, s{sWm}, 10",
                f"s_add_u32 s{sXw}, s{sXr}, s{sT0}",
                f"s_add_u32 s{sXr}, s{sXr}, 32768",
                f"s_cmp_eq_u32 s{sXr}, {3*32768}",
                f"s_cselect_b32 s{sXr}, 0, s{sXr}",
                f"v_add_u32 v{vXr[0]}, s{sXr}, v{vXb}",
                f"v_xor_b32 v{vXr[1]}, 32, v{vXr[0]}",
                f"v_xor_b32 v{vXr[2]}, 64, v{vXr[0]}",
                f"s_add_u32 s{sT0}, s{sXk}, 128",
                f"s_and_b32 s{sT0}, s{sT0}, 2047",
                f"s_cmp_ge_u32 s{sI}, 13",
                f"s_cselect_b32 s{sXk}, 524288, s{sT0}"]
        emit_substep(0, reads(1, 3, 1), ["s_waitcnt lgkmcnt(0)"], g_x(1) if ld else [], post)
        pre = adv_w_slot() + [f"v_xor_b32 v{vXr[3]}, 96, v{vXr[0]}", f"s_waitcnt {vm}lgkmcnt(0)", "s_barrier"]
        post = [f"s_add_u32 s{sI}, s{sI}, 1",
                f"s_cmp_lt_u32 s{sI}, 16",
                f"s_cbranch_scc1 {lab}"]
        emit_substep(1, reads(0, 0, 0), pre, g_w(f"s{sWp1}") if ld else [], post)

    a(f"s_cmp_ge_u32 s{sWave}, 4")
    a("s_cbranch_scc1 K1_P")
    loop("L")
    a("s_branch K1_EPI")
    a.label("K1_P")
    loop("P")
    a.label("K1_EPI")

    stamp(a, 3)
    a("s_nop 15")
    sHead, sTile = 64, 65
    a(f"s_lshl_b32 s{sHead}, s{sHs[1]}, 1")
    a(f"s_add_u32 s{sHead}, s{sHead}, s{sWn}")
    a(f"s_lshl_b32 s{sTile}, s{sMblk}, 3")
    a(f"s_lshl_b32 s{sT0}, s{sWm}, 1")
    a(f"s_add_u32 s{sTile}, s{sTile}, s{sT0}")
    for sg in range(3):
        a(f"s_lshl_b32 s{sT0}, s{sHs[sg]}, 1")
        a(f"s_add_u32 s{sT0}, s{sT0}, s{sWn}")
        a(f"s_lshl_b32 s{sT0}, s{sT0}, 6")
        a(f"s_add_u32 s{sHs[sg]}, s{sT0}, s{sTile}")
    vL16 = vT
    a(f"v_lshlrev_b32 v{vL16}, 4, v{vLane}")
    a(f"s_cmp_eq_u32 s{sProb}, 1")
    a("s_cbranch_scc1 K1_EPI_B")
    sQo, sKo, sVo = 66, 67, 71
    a(f"s_lshl_b32 s{sQo}, s{sHs[0]}, 11")
    a(f"s_add_u32 s{sQo}, s{sQo}, {QA_OFF}")
    a(f"s_lshl_b32 s{sKo}, s{sHs[1]}, 12")
    a(f"s_add_u32 s{sKo}, s{sKo}, {KVA_OFF}")
    a(f"s_add_u32 s{sT1}, s{sKo}, 4096")
    a(f"s_lshl_b32 s{sVo}, s{sHs[2]}, 12")
    a(f"s_add_u32 s{sVo}, s{sVo}, {KVA_OFF}")
    a(f"s_add_u32 s{sT3}, s{sVo}, 4096")
    a(f"s_mov_b32 s{sT2}, {f32hex(QSCALE)}")
    PK = FR
    n = 0
    for s in range(3):
        for tt in range(2):
            A0 = acc(s, tt)
            P = PK + (n % 4) * 8
            n += 1
            if s == 0:
                for i in range(16):
                    a(f"v_mul_f32 v{A0+i}, s{sT2}, v{A0+i}")
            for i in range(8):
                a(f"v_cvt_pk_bf16_f32 v{P+i}, v{A0+2*i}, v{A0+2*i+1}")
            if s == 0:
                so, off = sQo, tt * 2048
            else:
                so = (sKo if tt == 0 else sT1) if s == 1 else (sVo if tt == 0 else sT3)
                off = (s - 1) * 2048
            a(f"buffer_store_dwordx4 {vr(P,4)}, v{vL16}, s[{SWS}:{SWS+3}], s{so} offen offset:{off}")
            a(f"buffer_store_dwordx4 {vr(P+4,4)}, v{vL16}, s[{SWS}:{SWS+3}], s{so} offen offset:{off+1024}")
    if STAMP:
        stamp(a, 4)
        a("s_waitcnt vmcnt(0)")
        stamp(a, 5); stamp(a, 7, True)
        stamp_store(a, sWave, 0, 16)
    a("s_endpgm")

    a.label("K1_EPI_B")
    a(f"s_lshl_b32 s{sQo}, s{sHs[0]}, 11")
    a(f"s_add_u32 s{sQo}, s{sQo}, {QB_OFF}")
    a(f"s_mov_b32 s{S_LOG2E}, {f32hex(LOG2E)}")
    a(f"s_mov_b32 s{S_LOG2E+1}, {f32hex(LOG2E)}")
    a("s_waitcnt vmcnt(0) lgkmcnt(0)")
    a("s_barrier")
    if os.environ.get("STAMPB"):
        stamp(a, 1)
    a(f"s_lshl_b32 s{sT1}, s{sWn}, 11")
    a(f"s_add_u32 s{sT1}, s{sT1}, {K1_PHI}")
    for tt in range(2):
        A0 = acc(0, tt)
        P = PK + tt * 8
        for i in range(8):
            a(f"v_cvt_pk_bf16_f32 v{P+i}, v{A0+2*i}, v{A0+2*i+1}")
        a(f"buffer_store_dwordx4 {vr(P,4)}, v{vL16}, s[{SWS}:{SWS+3}], s{sQo} offen offset:{tt*2048}")
        a(f"buffer_store_dwordx4 {vr(P+4,4)}, v{vL16}, s[{SWS}:{SWS+3}], s{sQo} offen offset:{tt*2048+1024}")
    KF = 128
    VF = 144
    WPH = 160
    ONES = 168
    PHI = 172
    AF = 188
    EE = 204
    TT = 236
    SS = ACC
    KV = ACC + 16
    for tt in range(2):
        for i in range(8):
            a(f"v_cvt_pk_bf16_f32 v{KF+tt*8+i}, v{acc(1,tt)+2*i}, v{acc(1,tt)+2*i+1}")
        for i in range(8):
            a(f"v_cvt_pk_bf16_f32 v{VF+tt*8+i}, v{acc(2,tt)+2*i}, v{acc(2,tt)+2*i+1}")
    KVa = [acc(0, 1), acc(1, 0)]
    Za = [acc(1, 1), acc(2, 0)]
    for i in range(4):
        a(f"v_mov_b32 v{ONES+i}, 0x3f803f80")
    vA = vT + 1
    a(f"v_bfe_u32 v{vT+2}, v{vLane}, 2, 2")
    a(f"v_lshrrev_b32 v{vT+3}, 5, v{vLane}")
    a(f"v_lshl_add_u32 v{vT+2}, v{vT+3}, 2, v{vT+2}")
    a(f"v_lshlrev_b32 v{vA}, 6, v{vT+2}")
    a(f"v_bfe_u32 v{vT+2}, v{vLane}, 4, 1")
    a(f"v_lshl_add_u32 v{vA}, v{vT+2}, 5, v{vA}")
    a(f"v_and_b32 v{vT+2}, 3, v{vLane}")
    a(f"v_lshl_add_u32 v{vA}, v{vT+2}, 3, v{vA}")
    a(f"v_add_u32 v{vA}, s{sT1}, v{vA}")
    for tp in range(2):
        for t4 in range(2):
            a(f"ds_read_b64_tr_b16 {vr(WPH+tp*4+t4*2,2)}, v{vA} offset:{tp*1024+t4*512}")
    vWa = vT + 2
    vRa = vT + 3
    vU = vT + 4
    a(f"v_and_b32 v{vU}, 31, v{vLane}")
    a(f"v_lshrrev_b32 v{vWa}, 5, v{vLane}")
    a(f"v_lshlrev_b32 v{vWa}, 1, v{vWa}")
    a(f"v_and_b32 v{vRa}, 7, v{vU}")
    a(f"v_xor_b32 v{vWa}, v{vWa}, v{vRa}")
    a(f"v_lshlrev_b32 v{vWa}, 4, v{vWa}")
    a(f"v_lshl_add_u32 v{vWa}, v{vU}, 7, v{vWa}")
    a(f"s_lshl_b32 s{sT2}, s{sWave}, 13")
    a(f"v_add_u32 v{vWa}, s{sT2}, v{vWa}")
    a(f"v_bfe_u32 v{vU}, v{vLane}, 2, 2")
    a(f"v_lshrrev_b32 v{vRa}, 5, v{vLane}")
    a(f"v_lshl_add_u32 v{vU}, v{vRa}, 2, v{vU}")
    a(f"v_and_b32 v{vRa}, 1, v{vLane}")
    a(f"v_lshlrev_b32 v{vRa}, 1, v{vRa}")
    a(f"v_bfe_u32 v{TT}, v{vLane}, 4, 1")
    a(f"v_add_u32 v{vRa}, v{vRa}, v{TT}")
    a(f"v_xor_b32 v{vRa}, v{vRa}, v{vU}")
    a(f"v_lshlrev_b32 v{vRa}, 4, v{vRa}")
    a(f"v_lshl_add_u32 v{vRa}, v{vU}, 7, v{vRa}")
    a(f"v_bfe_u32 v{TT}, v{vLane}, 1, 1")
    a(f"v_lshl_add_u32 v{vRa}, v{TT}, 3, v{vRa}")
    a(f"v_add_u32 v{vRa}, s{sT2}, v{vRa}")
    vRb = vU
    a(f"v_xor_b32 v{vRb}, 64, v{vRa}")
    vW2, vW3, vW4 = TT + 8, TT + 9, TT + 10
    a(f"v_xor_b32 v{vW2}, 16, v{vWa}")
    a(f"v_xor_b32 v{vW3}, 64, v{vWa}")
    a(f"v_xor_b32 v{vW4}, 0x50, v{vWa}")
    if os.environ.get("STAMPB") == "1":
        stamp(a, 2)
    a("s_waitcnt lgkmcnt(0)")
    for tt in range(2):
        mfma32(a, SS, WPH, KF + tt * 8, None)
        mfma32(a, SS, WPH + 4, KF + tt * 8 + 4, SS)
        a("s_nop 15")
        softmax_pm(a, SS, EE, TT, PHI)
        a(f"ds_write_b128 v{vWa}, {vr(PHI,4)} offset:{tt*4096}")
        a(f"ds_write_b128 v{vW2}, {vr(PHI+4,4)} offset:{tt*4096}")
        a(f"ds_write_b128 v{vW3}, {vr(PHI+8,4)} offset:{tt*4096}")
        a(f"ds_write_b128 v{vW4}, {vr(PHI+12,4)} offset:{tt*4096}")
        a("s_waitcnt lgkmcnt(0)")
        for fh in range(2):
            for t in range(2):
                for t4 in range(2):
                    a(f"ds_read_b64_tr_b16 {vr(AF+(fh*2+t)*4+t4*2,2)}, v{vRa if fh==0 else vRb} offset:{tt*4096+t*2048+t4*1024}")
        a("s_waitcnt lgkmcnt(0)")
        for fh in range(2):
            for t in range(2):
                first = (tt == 0 and t == 0)
                mfma32(a, KVa[fh], AF + (fh * 2 + t) * 4, VF + tt * 8 + t * 4, None if first else KVa[fh])
                mfma32(a, Za[fh], AF + (fh * 2 + t) * 4, ONES, None if first else Za[fh])
    if os.environ.get("STAMPB") == "2":
        stamp(a, 2)
    a("s_nop 15")
    RED, ZRED = 65536, 147456
    a(f"s_lshl_b32 s{sT2}, s{sWave}, 13")
    a(f"s_add_u32 s{sT2}, s{sT2}, {RED}")
    a(f"v_add_u32 v{vWa}, s{sT2}, v{vL16}")
    for fh in range(2):
        for q4 in range(4):
            a(f"ds_write_b128 v{vWa}, {vr(KVa[fh]+q4*4,4)} offset:{(fh*4+q4)*1024}")
    a(f"v_lshrrev_b32 v{vRa}, 5, v{vLane}")
    a(f"v_lshlrev_b32 v{vRa}, 5, v{vRa}")
    a(f"s_lshl_b32 s{sT2}, s{sWave}, 8")
    a(f"s_add_u32 s{sT2}, s{sT2}, {ZRED}")
    a(f"v_add_u32 v{vRa}, s{sT2}, v{vRa}")
    a(f"s_mov_b32 s{sT2}, 1")
    a(f"s_mov_b32 s{sT3}, 1")
    a(f"s_mov_b64 exec, s[{sT2}:{sT3}]")
    for fh in range(2):
        for q4 in range(4):
            a(f"ds_write_b128 v{vRa}, {vr(Za[fh]+q4*4,4)} offset:{(fh*2+q4//2)*64+(q4%2)*16}")
    a("s_mov_b64 exec, -1")
    a("s_waitcnt lgkmcnt(0)")
    a("s_barrier")
    a(f"s_lshl_b32 s{sT2}, s{sWn}, 15")
    a(f"s_lshl_b32 s{sT3}, s{sWm}, 11")
    a(f"s_add_u32 s{sT2}, s{sT2}, s{sT3}")
    a(f"s_add_u32 s{sT2}, s{sT2}, {RED}")
    a(f"v_add_u32 v{vWa}, s{sT2}, v{vL16}")
    for w4 in range(4):
        for qq in range(2):
            a(f"ds_read_b128 {vr(EE+(w4*2+qq)*4,4)}, v{vWa} offset:{w4*8192+qq*1024}")
    a(f"s_lshl_b32 s{sT2}, s{sWn}, 10")
    a(f"s_add_u32 s{sT2}, s{sT2}, {ZRED}")
    a(f"v_lshlrev_b32 v{vRa}, 2, v{vLane}")
    a(f"v_add_u32 v{vU}, s{sT2}, v{vRa}")
    for w4 in range(4):
        a(f"ds_read_b32 v{TT+w4}, v{vU} offset:{w4*256}")
    a("s_waitcnt lgkmcnt(0)")
    for w4 in range(1, 4):
        for i in range(8):
            a(f"v_add_f32 v{EE+i}, v{EE+i}, v{EE+w4*8+i}")
        a(f"v_add_f32 v{TT}, v{TT}, v{TT+w4}")
    a(f"s_lshl_b32 s{sT2}, s{sHead}, 3")
    a(f"s_add_u32 s{sT2}, s{sT2}, s{sMblk}")
    a(f"s_lshl_b32 s{sT1}, s{sT2}, 13")
    a(f"s_add_u32 s{sT1}, s{sT1}, s{sT3}")
    a(f"s_add_u32 s{sT1}, s{sT1}, {KVP_OFF}")
    a(f"buffer_store_dwordx4 {vr(EE,4)}, v{vL16}, s[{SWS}:{SWS+3}], s{sT1} offen")
    a(f"buffer_store_dwordx4 {vr(EE+4,4)}, v{vL16}, s[{SWS}:{SWS+3}], s{sT1} offen offset:1024")
    a(f"s_cmp_lg_u32 s{sWm}, 0")
    a("s_cbranch_scc1 K1_END2")
    a(f"s_lshl_b32 s{sT2}, s{sT2}, 8")
    a(f"s_add_u32 s{sT2}, s{sT2}, {ZP_OFF}")
    a(f"buffer_store_dword v{TT}, v{vRa}, s[{SWS}:{SWS+3}], s{sT2} offen")
    a.label("K1_END2")
    if STAMP:
        stamp(a, 4)
        a("s_waitcnt vmcnt(0)")
        stamp(a, 5); stamp(a, 7, True)
        stamp_store(a, sWave, 0, 16)
    a.label("K1_END")
    a("s_endpgm")
    kernel_desc(a, name, 248)
    return name, (256, 1, 1), (512, 1, 1), K1_LDS


K2_RING = 4
K2_AUX = 131072
K2_LDS = 131072 + 9216


def gen_k2(a):
    name = "k2_attn_kernel"
    kernel_begin(a, name)
    SKV, SWS, SPHI, SWO = 4, 8, 12, 16
    sHead, sQb, sWave, sTile = 20, 21, 22, 23
    sC, sKo, sLw = 24, 25, 26
    sCur, sNext = 27, 28
    sT0, sT1, sT2, sT3 = 32, 33, 34, 35
    sOo, sQBo = 36, 37
    sPtr = 40
    vLane, vL16 = 1, 2
    vCur, vNext = 3, 4
    vT = 5
    QF = 12
    KF = 20
    VF = 28
    S0 = 36
    S1 = 52
    P = 68
    O = 76
    L = 92
    SEL = 96
    HB = 100
    QB = HB
    KP = HB + 8
    ZQ = HB + 40
    WPH = HB + 8
    KVF = HB + 16
    ZF = HB + 32
    PHI = HB + 48
    EE = HB + 64
    TT = HB + 96
    SS = HB + 104
    NUM, DEN = SS, EE
    vH = HB + 120
    vPF = HB + 124
    a("s_cmp_ge_u32 s2, 256")
    a("s_cbranch_scc1 K2_END")
    a(f"s_load_dwordx2 s[{sPtr}:{sPtr+1}], s[0:1], 72")
    a(f"s_load_dwordx4 s[{sPtr+4}:{sPtr+7}], s[0:1], 40")
    a(f"s_load_dwordx2 s[{sPtr+2}:{sPtr+3}], s[0:1], 16")
    if STAMP:
        for i in range(16):
            a(f"s_mov_b32 s{S_ST+i}, 0")
    stamp(a, 0); stamp(a, 6, True)
    a(f"v_and_b32 v{vLane}, 63, v0")
    a(f"v_lshrrev_b32 v{vT}, 6, v0")
    a(f"s_and_b32 s{sT0}, s2, 7")
    a(f"s_lshr_b32 s{sT1}, s2, 3")
    a(f"v_readfirstlane_b32 s{sWave}, v{vT}")
    a(f"s_lshl_b32 s{sHead}, s{sT0}, 2")
    a(f"s_and_b32 s{sT2}, s{sT1}, 3")
    a(f"s_add_u32 s{sHead}, s{sHead}, s{sT2}")
    a(f"s_lshr_b32 s{sQb}, s{sT1}, 2")
    a(f"v_lshlrev_b32 v{vL16}, 4, v{vLane}")
    a(f"s_lshl_b32 s{sTile}, s{sQb}, 3")
    a(f"s_add_u32 s{sTile}, s{sTile}, s{sWave}")
    a(f"s_lshl_b32 s{sKo}, s{sWave}, 12")
    a(f"s_mov_b32 s{sLw}, s{sKo}")
    a(f"s_lshl_b32 s{sT0}, s{sHead}, 18")
    a(f"s_add_u32 s{sT0}, s{sT0}, {KVA_OFF}")
    a(f"s_lshl_b32 s{sOo}, s{sHead}, 6")
    a(f"s_add_u32 s{sOo}, s{sOo}, s{sTile}")
    a(f"s_lshl_b32 s{sOo}, s{sOo}, 11")
    a("s_waitcnt lgkmcnt(0)")
    a(f"s_add_u32 s{sT2}, s{sPtr}, s{sT0}")
    a(f"s_addc_u32 s{sT3}, s{sPtr+1}, 0")
    srd(a, SKV, sT2, sT3, 262144)
    srd(a, SWS, sPtr, sPtr + 1, WS_USED)

    def dma_chunk():
        a(f"s_mov_b32 m0, s{sLw}")
        a(f"s_min_u32 s{sT0}, s{sKo}, 262144")
        for i in range(4):
            a(f"buffer_load_dwordx4 v{vL16}, s[{SKV}:{SKV+3}], s{sT0} offen offset:{i*1024} lds")
        a(f"s_add_u32 s{sKo}, s{sKo}, 32768")
        a(f"s_add_u32 s{sLw}, s{sLw}, 32768")
        a(f"s_and_b32 s{sLw}, s{sLw}, {K2_RING*32768-1}")
    dma_chunk()
    assert QA_OFF == 0
    a(f"buffer_load_dwordx4 {vr(QF,4)}, v{vL16}, s[{SWS}:{SWS+3}], s{sOo} offen")
    a(f"buffer_load_dwordx4 {vr(QF+4,4)}, v{vL16}, s[{SWS}:{SWS+3}], s{sOo} offen offset:1024")
    srd(a, SPHI, sPtr + 4, sPtr + 5, 65536)
    a(f"s_add_u32 s{sQBo}, s{sOo}, {QB_OFF}")

    sKPo, sZo = 38, 39
    a(f"s_lshl_b32 s{sKPo}, s{sHead}, 16")
    a(f"s_lshl_b32 s{sT2}, s{sWave}, 10")
    a(f"s_add_u32 s{sKPo}, s{sKPo}, s{sT2}")
    a(f"s_add_u32 s{sKPo}, s{sKPo}, {KVP_OFF}")
    a(f"s_lshl_b32 s{sZo}, s{sHead}, 11")
    a(f"s_lshl_b32 s{sT2}, s{sWave}, 8")
    a(f"s_add_u32 s{sZo}, s{sZo}, s{sT2}")
    a(f"s_add_u32 s{sZo}, s{sZo}, {ZP_OFF}")
    a(f"v_lshlrev_b32 v{vH}, 2, v{vLane}")

    def side_loads(t):
        r = [f"buffer_load_dwordx4 {vr(KP+4*t,4)}, v{vL16}, s[{SWS}:{SWS+3}], s{sKPo} offen",
             f"s_add_u32 s{sKPo}, s{sKPo}, 8192"]
        if t == 0:
            r.append(f"buffer_load_dwordx4 {vr(QB,4)}, v{vL16}, s[{SWS}:{SWS+3}], s{sQBo} offen")
        if t == 1:
            r.append(f"buffer_load_dwordx4 {vr(QB+4,4)}, v{vL16}, s[{SWS}:{SWS+3}], s{sQBo} offen offset:1024")
        if t == 2:
            r.append(f"buffer_load_dword v{ZQ}, v{vH}, s[{SWS}:{SWS+3}], s{sZo} offen")
        if t == 3:
            r += [f"s_lshl_b32 s{sT1}, s{sHead}, 11",
                  f"s_lshl_b32 s{sT2}, s{sWave}, 8",
                  f"s_add_u32 s{sT1}, s{sT1}, s{sT2}",
                  f"s_add_u32 m0, s{sT2}, {K2_AUX+6144}",
                  "s_nop 0",
                  f"buffer_load_dword v{vH}, s[{SPHI}:{SPHI+3}], s{sT1} offen lds"]
        return r

    a("s_bitcmp1_b32 s2, 2")
    a(f"s_cselect_b32 s{sT0}, s{sPtr+6}, s{sPtr+2}")
    a(f"s_cselect_b32 s{sT1}, s{sPtr+7}, s{sPtr+3}")
    srd(a, SWO, sT0, sT1, 2097152)
    a(f"s_mov_b32 s{S_LOG2E}, {f32hex(LOG2E)}")
    a(f"s_mov_b32 s{S_LOG2E+1}, {f32hex(LOG2E)}")
    a(f"s_lshl_b32 s{sOo}, s{sTile}, 5")
    a(f"s_add_u32 s{sOo}, s{sOo}, s{sHead}")
    a(f"s_lshl_b32 s{sOo}, s{sOo}, 11")
    a(f"s_add_u32 s{sOo}, s{sOo}, {O_OFF}")
    a(f"v_bfe_u32 v{vT}, v{vLane}, 4, 1")
    a(f"v_bfe_u32 v{vT+1}, v{vLane}, 2, 1")
    a(f"v_cmp_eq_u32 vcc, v{vT}, v{vT+1}")
    a(f"v_mov_b32 v{vT+2}, 0x3f803f80")
    a("s_nop 1")
    a(f"v_cndmask_b32 v{SEL}, 0, v{vT+2}, vcc")
    for i in range(1, 4):
        a(f"v_mov_b32 v{SEL+i}, v{SEL}")
    for i in range(16):
        a(f"v_mov_b32 v{O+i}, 0")
    for i in range(4):
        a(f"v_mov_b32 v{L+i}, 0")
        a(f"v_mov_b32 v{P+4+i}, 0")
        a(f"v_mov_b32 v{VF+4+i}, 0")
    a(f"s_mov_b32 s{sCur}, 0")
    a(f"s_mov_b32 s{sNext}, 32768")
    a(f"v_mov_b32 v{vCur}, v{vL16}")
    a(f"v_add_u32 v{vNext}, 32768, v{vL16}")
    stamp(a, 1)
    a("s_waitcnt vmcnt(0)")
    a("s_barrier")
    stamp(a, 2)
    a(f"ds_read_b128 {vr(KF,4)}, v{vCur}")
    a(f"ds_read_b128 {vr(KF+4,4)}, v{vCur} offset:1024")
    dma_chunk()
    a("s_waitcnt lgkmcnt(0)")
    mfma32(a, S0, KF, QF, None)
    mfma32(a, S0, KF + 4, QF + 4, S0)
    a(f"ds_read_b128 {vr(KF,4)}, v{vCur} offset:4096")
    a(f"ds_read_b128 {vr(KF+4,4)}, v{vCur} offset:{4096+1024}")
    a(f"ds_read_b128 {vr(VF,4)}, v{vCur} offset:2048")
    a("s_waitcnt lgkmcnt(0)")
    a(f"s_mov_b32 s{sC}, 0")
    a("s_nop 7")

    def rd(dst, tile, part):
        if tile < 8:
            return f"ds_read_b128 {vr(dst,4)}, v{vCur} offset:{tile*4096+part*1024}"
        return f"ds_read_b128 {vr(dst,4)}, v{vNext} offset:{(tile-8)*4096+part*1024}"

    a(".p2align 6")
    a.label("K2_LOOP")
    for t in range(8):
        Sc = S0 if t % 2 == 0 else S1
        Sn = S1 if t % 2 == 0 else S0
        e = lambda i: a(f"v_exp_f32 v{Sc+i}, v{Sc+i}")
        cv = lambda i: a(f"v_cvt_pk_bf16_f32 v{P+i}, v{Sc+2*i}, v{Sc+2*i+1}")
        if t == 6:
            a("s_waitcnt vmcnt(0)")
            a("s_barrier")
        a("s_waitcnt lgkmcnt(3)")
        mfma32(a, Sn, KF, QF, None)
        a(rd(KF, t + 2, 0))
        e(0); e(1); e(2); e(3)
        a("s_waitcnt lgkmcnt(3)")
        mfma32(a, O, VF + 4, P + 4, O)
        a(rd(VF + 4, t, 3))
        cv(0); e(4); cv(1); e(5)
        a("s_waitcnt lgkmcnt(3)")
        mfma32(a, Sn, KF + 4, QF + 4, Sn)
        a(rd(KF + 4, t + 2, 1))
        e(6); e(7); cv(2); e(8)
        mfma16(a, L, SEL, P + 4, L)
        cv(3); e(9)
        e(10); e(11)
        a("s_waitcnt lgkmcnt(3)")
        mfma32(a, O, VF, P, O)
        a(rd(VF, t + 1, 2))
        cv(4); e(12); cv(5); e(13)
        mfma16(a, L, SEL, P, L)
        if t == 6:
            dma_chunk()
        e(14); e(15); cv(6)
        if t == 7:
            a(f"s_mov_b32 s{sCur}, s{sNext}")
            a(f"s_add_u32 s{sNext}, s{sNext}, 32768")
            a(f"s_and_b32 s{sNext}, s{sNext}, {K2_RING*32768-1}")
            a(f"s_add_u32 s{sC}, s{sC}, 1")
        cv(7)
        if t == 7:
            a(f"v_mov_b32 v{vCur}, v{vNext}")
            a(f"v_add_u32 v{vNext}, s{sNext}, v{vL16}")
            a(f"s_cmp_lt_u32 s{sC}, 5")
            a("s_cbranch_scc1 K2_SIDE")
            a(f"s_cmp_lt_u32 s{sC}, 8")
            a("s_cbranch_scc1 K2_LOOP")
    a("s_branch K2_DONE")
    a.label("K2_SIDE")
    a(f"s_cmp_eq_u32 s{sC}, 4")
    a("s_cbranch_scc1 K2_SIDE2")
    a(f"s_cmp_eq_u32 s{sC}, 3")
    a("s_cbranch_scc1 K2_SIDE1")
    a(f"s_cmp_eq_u32 s{sC}, 2")
    a("s_cbranch_scc1 K2_SIDE0B")
    for t in range(3):
        for x in side_loads(t):
            a(x)
    a("s_branch K2_LOOP")
    a.label("K2_SIDE0B")
    for t in range(3, 8):
        for x in side_loads(t):
            a(x)
    a("s_branch K2_LOOP")
    a.label("K2_SIDE1")
    for mb in range(1, 8):
        for i in range(4):
            a(f"v_add_f32 v{KP+i}, v{KP+i}, v{KP+4*mb+i}")
    a(f"v_cvt_pk_bf16_f32 v{KP+4}, v{KP}, v{KP+1}")
    a(f"v_cvt_pk_bf16_f32 v{KP+5}, v{KP+2}, v{KP+3}")
    a(f"s_lshr_b32 s{sT0}, s{sWave}, 1")
    a(f"s_lshl_b32 s{sT0}, s{sT0}, 10")
    a(f"s_and_b32 s{sT1}, s{sWave}, 1")
    a(f"s_lshl_b32 s{sT1}, s{sT1}, 3")
    a(f"s_add_u32 s{sT0}, s{sT0}, s{sT1}")
    a(f"s_add_u32 s{sT0}, s{sT0}, {K2_AUX}")
    a(f"v_add_u32 v{vH+1}, s{sT0}, v{vL16}")
    a(f"ds_write_b64 v{vH+1}, {vr(KP+4,2)}")
    a(f"s_lshl_b32 s{sT0}, s{sWave}, 8")
    a(f"s_add_u32 s{sT0}, s{sT0}, {K2_AUX+4096}")
    a(f"v_add_u32 v{vH+1}, s{sT0}, v{vH}")
    a(f"ds_write_b32 v{vH+1}, v{ZQ}")
    if not os.environ.get("NOPFWO"):
        a(f"v_lshrrev_b32 v{vH+2}, 3, v{vLane}")
        a(f"v_and_b32 v{vH+2}, 3, v{vH+2}")
        a(f"s_lshr_b32 s{sT0}, s2, 3")
        a(f"s_lshl_b32 s{sT0}, s{sT0}, 5")
        a(f"s_lshl_b32 s{sT1}, s{sWave}, 2")
        a(f"s_add_u32 s{sT0}, s{sT0}, s{sT1}")
        a(f"v_add_u32 v{vH+2}, s{sT0}, v{vH+2}")
        a(f"v_lshlrev_b32 v{vH+2}, 11, v{vH+2}")
        a(f"v_and_b32 v{vH+3}, 7, v{vLane}")
        a(f"v_lshl_add_u32 v{vH+2}, v{vH+3}, 7, v{vH+2}")
        a(f"s_and_b32 s{sT0}, s2, 1")
        a(f"s_lshl_b32 s{sT0}, s{sT0}, 10")
        a("s_mov_b64 exec, 0xffffffff")
        a(f"buffer_load_dword v{vPF}, v{vH+2}, s[{SWO}:{SWO+3}], s{sT0} offen")
        a("s_mov_b64 exec, -1")
    a("s_waitcnt lgkmcnt(0)")
    a("s_branch K2_LOOP")
    a.label("K2_SIDE2")
    a(f"v_add_u32 v{vH+1}, {K2_AUX+4096}, v{vH}")
    for mb in range(8):
        a(f"ds_read_b32 v{EE+mb}, v{vH+1} offset:{mb*256}")
    vA = vH + 1
    a(f"v_bfe_u32 v{vH+2}, v{vLane}, 2, 2")
    a(f"v_lshrrev_b32 v{vH+3}, 5, v{vLane}")
    a(f"v_lshl_add_u32 v{vH+2}, v{vH+3}, 2, v{vH+2}")
    a(f"v_lshlrev_b32 v{vA}, 6, v{vH+2}")
    a(f"v_bfe_u32 v{vH+2}, v{vLane}, 4, 1")
    a(f"v_lshl_add_u32 v{vA}, v{vH+2}, 5, v{vA}")
    a(f"v_and_b32 v{vH+2}, 3, v{vLane}")
    a(f"v_lshl_add_u32 v{vA}, v{vH+2}, 3, v{vA}")
    a(f"v_add_u32 v{vA}, {K2_AUX+6144}, v{vA}")
    a(f"s_lshl_b32 s{sT0}, s{sWave}, 7")
    a(f"s_add_u32 s{sT0}, s{sT0}, {K2_AUX+8192}")
    a(f"v_lshlrev_b32 v{vH+3}, 4, v{vH+3}")
    a(f"v_add_u32 v{vH+3}, s{sT0}, v{vH+3}")
    a(f"v_add_u32 v{vH+2}, {K2_AUX}, v{vL16}")
    for tp in range(2):
        for t4 in range(2):
            a(f"ds_read_b64_tr_b16 {vr(WPH+tp*4+t4*2,2)}, v{vA} offset:{tp*1024+t4*512}")
    for f in range(4):
        a(f"ds_read_b128 {vr(KVF+4*f,4)}, v{vH+2} offset:{f*1024}")
    a(f"v_lshrrev_b32 v{vH}, 1, v{vH}")
    a(f"v_add_u32 v{vH}, s{sT0}, v{vH}")
    a("s_waitcnt lgkmcnt(8)")
    for mb in range(1, 8):
        a(f"v_add_f32 v{EE}, v{EE}, v{EE+mb}")
    a(f"v_cvt_pk_bf16_f32 v{EE}, v{EE}, v{EE}")
    a(f"ds_write_b16 v{vH}, v{EE}")
    for f in range(4):
        a(f"ds_read_b128 {vr(ZF+4*f,4)}, v{vH+3} offset:{f*32}")
    a("s_waitcnt lgkmcnt(9)")
    mfma32(a, SS, WPH, QB, None)
    mfma32(a, SS, WPH + 4, QB + 4, SS)
    a("s_nop 15")
    softmax_pm(a, SS, EE, TT, PHI)
    a("s_waitcnt lgkmcnt(0)")
    a("s_nop 0")
    for f in range(4):
        mfma32(a, DEN, ZF + 4 * f, PHI + 4 * f, None if f == 0 else DEN)
    for f in range(4):
        mfma32(a, NUM, KVF + 4 * f, PHI + 4 * f, None if f == 0 else NUM)
    a(f"s_mov_b32 s{sT0}, {f32hex(1e-6)}")
    a("s_nop 7")
    a(f"v_add_f32 v{TT}, s{sT0}, v{DEN}")
    a(f"v_rcp_f32 v{TT}, v{TT}")
    a("s_nop 7")
    for i in range(16):
        a(f"v_mul_f32 v{NUM+i}, v{NUM+i}, v{TT}")
    for i in range(8):
        a(f"v_cvt_pk_bf16_f32 v{PHI+i}, v{NUM+2*i}, v{NUM+2*i+1}")
    a(f"s_add_u32 s{sT0}, s{sOo}, {4<<20}")
    a(f"buffer_store_dwordx4 {vr(PHI,4)}, v{vL16}, s[{SWS}:{SWS+3}], s{sT0} offen")
    a(f"buffer_store_dwordx4 {vr(PHI+4,4)}, v{vL16}, s[{SWS}:{SWS+3}], s{sT0} offen offset:1024")
    a("s_branch K2_LOOP")
    a.label("K2_DONE")
    stamp(a, 3)
    a("s_waitcnt lgkmcnt(0)")
    mfma32(a, O, VF + 4, P + 4, O)
    mfma16(a, L, SEL, P + 4, L)
    a("s_nop 15")
    a("s_nop 3")
    a(f"s_mov_b32 s{sT0}, 0x21800000")
    a(f"s_mov_b32 s{sT1}, 0x5d800000")
    a(f"v_cmp_nge_f32 s[{sPtr}:{sPtr+1}], v{L}, s{sT0}")
    a(f"v_cmp_nle_f32 vcc, v{L}, s{sT1}")
    a(f"s_or_b64 s[{sPtr}:{sPtr+1}], s[{sPtr}:{sPtr+1}], vcc")
    a(f"v_mul_f32 v{vT}, 0, v{O}")
    for i in range(1, 16):
        a(f"v_fma_f32 v{vT}, v{O+i}, 0, v{vT}")
    a(f"v_cmp_u_f32 vcc, v{vT}, v{vT}")
    a(f"s_or_b64 s[{sPtr}:{sPtr+1}], s[{sPtr}:{sPtr+1}], vcc")
    if os.environ.get("FORCE_SLOW"):
        a(f"s_mov_b64 s[{sPtr}:{sPtr+1}], -1")
    a(f"s_cmp_lg_u64 s[{sPtr}:{sPtr+1}], 0")
    a("s_cbranch_scc1 K2_SLOW")
    a.label("K2_FIN")
    a(f"v_rcp_f32 v{vT}, v{L}")
    a("s_nop 0")
    for i in range(16):
        a(f"v_mul_f32 v{O+i}, v{O+i}, v{vT}")
    for i in range(8):
        a(f"v_cvt_pk_bf16_f32 v{P+i}, v{O+2*i}, v{O+2*i+1}")
    a(f"buffer_store_dwordx4 {vr(P,4)}, v{vL16}, s[{SWS}:{SWS+3}], s{sOo} offen")
    a(f"buffer_store_dwordx4 {vr(P+4,4)}, v{vL16}, s[{SWS}:{SWS+3}], s{sOo} offen offset:1024")
    if STAMP:
        stamp(a, 4)
        a("s_waitcnt vmcnt(0)")
        stamp(a, 5); stamp(a, 7, True)
        stamp_store(a, sWave, 1, 16)
    a.label("K2_END")
    a("s_endpgm")
    a.label("K2_SLOW")
    vM, vLs, vMx, vAl, vU = vT, vT + 1, vT + 2, vT + 3, vT + 4
    a(f"v_mov_b32 v{vM}, 0xff800000")
    a(f"v_mov_b32 v{vLs}, 0")
    for i in range(16):
        a(f"v_mov_b32 v{O+i}, 0")
    a(f"s_mov_b32 s{sT0}, 0")
    a.label("K2_SLOW_LOOP")
    for i in range(4):
        d = (KF, KF + 4, VF, VF + 4)[i]
        a(f"buffer_load_dwordx4 {vr(d,4)}, v{vL16}, s[{SKV}:{SKV+3}], s{sT0} offen offset:{i*1024}")
    a("s_waitcnt vmcnt(0)")
    mfma32(a, S0, KF, QF, None)
    mfma32(a, S0, KF + 4, QF + 4, S0)
    a("s_nop 15")
    a("s_nop 3")
    a(f"v_max3_f32 v{vMx}, v{S0}, v{S0+1}, v{vM}")
    for i in range(2, 16, 2):
        a(f"v_max3_f32 v{vMx}, v{S0+i}, v{S0+i+1}, v{vMx}")
    a(f"v_mov_b32 v{vU}, v{vMx}")
    a("s_nop 1")
    a(f"v_permlane32_swap_b32 v{vMx}, v{vU}")
    a("s_nop 1")
    a(f"v_max_f32 v{vMx}, v{vMx}, v{vU}")
    a(f"v_sub_f32 v{vAl}, v{vM}, v{vMx}")
    a(f"v_exp_f32 v{vAl}, v{vAl}")
    a(f"v_mov_b32 v{vM}, v{vMx}")
    for i in range(16):
        a(f"v_sub_f32 v{S0+i}, v{S0+i}, v{vMx}")
    for i in range(16):
        a(f"v_exp_f32 v{S0+i}, v{S0+i}")
    a(f"v_mul_f32 v{vLs}, v{vLs}, v{vAl}")
    for i in range(16):
        a(f"v_mul_f32 v{O+i}, v{O+i}, v{vAl}")
    for i in range(16):
        a(f"v_add_f32 v{vLs}, v{vLs}, v{S0+i}")
    for i in range(8):
        a(f"v_cvt_pk_bf16_f32 v{P+i}, v{S0+2*i}, v{S0+2*i+1}")
    a("s_nop 1")
    mfma32(a, O, VF, P, O)
    mfma32(a, O, VF + 4, P + 4, O)
    a("s_nop 15")
    a("s_nop 3")
    a(f"s_add_u32 s{sT0}, s{sT0}, 4096")
    a(f"s_cmp_lt_u32 s{sT0}, 262144")
    a("s_cbranch_scc1 K2_SLOW_LOOP")
    a(f"v_mov_b32 v{vU}, v{vLs}")
    a("s_nop 1")
    a(f"v_permlane32_swap_b32 v{vLs}, v{vU}")
    a("s_nop 1")
    a(f"v_add_f32 v{L}, v{vLs}, v{vU}")
    a("s_branch K2_FIN")
    kernel_desc(a, name, HB + 128)
    return name, (256, 1, 1), (512, 1, 1), K2_LDS


K3_NS = 5
K3_LDS = K3_NS * 32768


def gen_k3(a):
    name = "k3_oproj_kernel"
    kernel_begin(a, name)
    SX, SW, SO = 4, 8, 12
    sProb, sMb, sNb, sWave, sKh, sWm, sWn = 20, 21, 22, 23, 24, 25, 26
    sI, sRd, sWr = 27, 28, 29
    sXo, sWo = 30, 31
    sXl, sWl = 36, 37
    sT0, sT1, sT2, sT3 = 32, 33, 34, 35
    sPtr = 40
    vLane, vL16, vWd = 1, 2, 3
    vXb, vWb, vXr, vWr = 4, 5, 6, 7
    vT = 8
    ACC = 16
    FR = 80
    def acc(ct, tt): return ACC + (ct * 2 + tt) * 16
    def xf(st, tt): return FR + st * 16 + tt * 4
    def wf(st, ct): return FR + st * 16 + 8 + ct * 4
    a("s_cmp_ge_u32 s2, 256")
    a("s_cbranch_scc1 K3_END")
    a(f"s_load_dwordx2 s[{sPtr}:{sPtr+1}], s[0:1], 16")
    a(f"s_load_dwordx4 s[{sPtr+4}:{sPtr+7}], s[0:1], 48")
    a(f"s_load_dwordx2 s[{sPtr+2}:{sPtr+3}], s[0:1], 72")
    if STAMP:
        for i in range(16):
            a(f"s_mov_b32 s{S_ST+i}, 0")
    stamp(a, 0); stamp(a, 6, True)
    a(f"v_and_b32 v{vLane}, 63, v0")
    a(f"v_lshrrev_b32 v{vT}, 6, v0")
    a(f"s_and_b32 s{sT0}, s2, 7")
    a(f"s_lshr_b32 s{sT1}, s2, 3")
    a(f"v_readfirstlane_b32 s{sWave}, v{vT}")
    a(f"s_lshr_b32 s{sProb}, s{sT0}, 2")
    a(f"s_bfe_u32 s{sT2}, s{sT0}, 0x10001")
    a(f"s_lshl_b32 s{sT2}, s{sT2}, 3")
    a(f"s_and_b32 s{sT3}, s{sT1}, 7")
    a(f"s_add_u32 s{sMb}, s{sT2}, s{sT3}")
    a(f"s_and_b32 s{sT2}, s{sT0}, 1")
    a(f"s_lshl_b32 s{sT2}, s{sT2}, 2")
    a(f"s_lshr_b32 s{sT3}, s{sT1}, 3")
    a(f"s_add_u32 s{sNb}, s{sT2}, s{sT3}")
    a(f"s_lshr_b32 s{sKh}, s{sWave}, 2")
    a(f"s_bfe_u32 s{sWm}, s{sWave}, 0x10001")
    a(f"s_and_b32 s{sWn}, s{sWave}, 1")
    a(f"v_lshlrev_b32 v{vL16}, 4, v{vLane}")
    a(f"v_lshrrev_b32 v{vT}, 3, v{vLane}")
    a(f"v_bfe_u32 v{vT+2}, v{vT}, 1, 1")
    a(f"v_lshlrev_b32 v{vT+2}, 2, v{vT+2}")
    a(f"v_and_b32 v{vT+3}, 7, v{vLane}")
    a(f"v_xor_b32 v{vT+2}, v{vT+2}, v{vT+3}")
    a(f"v_lshlrev_b32 v{vT+2}, 4, v{vT+2}")
    a(f"v_lshl_add_u32 v{vWd}, v{vT}, 11, v{vT+2}")
    a("s_waitcnt lgkmcnt(0)")
    a(f"s_cmp_eq_u32 s{sProb}, 0")
    a(f"s_cselect_b32 s{sT0}, s{sPtr}, s{sPtr+4}")
    a(f"s_cselect_b32 s{sT1}, s{sPtr+1}, s{sPtr+5}")
    srd(a, SW, sT0, sT1, 2097152)
    a(f"s_lshl_b32 s{sT0}, s{sProb}, 22")
    a(f"s_lshl_b32 s{sT1}, s{sMb}, 18")
    a(f"s_add_u32 s{sT0}, s{sT0}, s{sT1}")
    a(f"s_add_u32 s{sT0}, s{sT0}, {O_OFF}")
    a(f"s_add_u32 s{sT2}, s{sPtr+2}, s{sT0}")
    a(f"s_addc_u32 s{sT3}, s{sPtr+3}, 0")
    srd(a, SX, sT2, sT3, 262144)
    srd(a, SO, sPtr + 6, sPtr + 7, 8388608)
    a(f"s_lshr_b32 s{sT0}, s{sWave}, 1")
    a(f"s_lshl_b32 s{sXo}, s{sT0}, 16")
    a(f"s_and_b32 s{sT1}, s{sWave}, 1")
    a(f"s_lshl_b32 s{sT1}, s{sT1}, 11")
    a(f"s_add_u32 s{sXo}, s{sXo}, s{sT1}")
    a(f"s_lshl_b32 s{sXl}, s{sWave}, 11")
    a(f"s_and_b32 s{sT0}, s{sWave}, 3")
    a(f"s_lshl_b32 s{sWo}, s{sT0}, 15")
    a(f"s_lshr_b32 s{sT1}, s{sWave}, 2")
    a(f"s_lshl_b32 s{sT1}, s{sT1}, 7")
    a(f"s_add_u32 s{sWo}, s{sWo}, s{sT1}")
    a(f"s_lshl_b32 s{sT1}, s{sNb}, 8")
    a(f"s_add_u32 s{sWo}, s{sWo}, s{sT1}")
    a(f"s_lshl_b32 s{sWl}, s{sWave}, 11")
    a(f"s_add_u32 s{sWl}, s{sWl}, 16384")
    a(f"s_mov_b32 s{sWr}, 0")
    a(f"s_mov_b32 s{sI}, 0")

    def dma_stage(lim):
        g = []
        g.append([f"s_add_u32 m0, s{sWr}, s{sXl}",
                  f"s_cmp_lt_u32 s{sI}, 16",
                  f"s_cselect_b32 s{sT0}, s{sXo}, 262144",
                  f"buffer_load_dwordx4 v{vL16}, s[{SX}:{SX+3}], s{sT0} offen lds"])
        g.append([f"buffer_load_dwordx4 v{vL16}, s[{SX}:{SX+3}], s{sT0} offen offset:1024 lds"])
        g.append([f"s_add_u32 m0, s{sWr}, s{sWl}",
                  f"s_min_u32 s{sT0}, s{sWo}, 2097152",
                  f"buffer_load_dwordx4 v{vWd}, s[{SW}:{SW+3}], s{sT0} offen {NTO} lds"])
        g.append([f"s_add_u32 m0, m0, 1024",
                  f"s_add_u32 s{sT0}, s{sWo}, 16384",
                  f"s_min_u32 s{sT0}, s{sT0}, 2097152",
                  f"buffer_load_dwordx4 v{vWd}, s[{SW}:{SW+3}], s{sT0} offen {NTO} lds"])
        g.append([f"s_add_u32 s{sXo}, s{sXo}, 4096",
                  f"s_add_u32 s{sWo}, s{sWo}, 131072",
                  f"s_add_u32 s{sI}, s{sI}, 1",
                  f"s_add_u32 s{sWr}, s{sWr}, 32768",
                  f"s_cmp_eq_u32 s{sWr}, {K3_NS*32768}",
                  f"s_cselect_b32 s{sWr}, 0, s{sWr}"])
        return g
    for st in range(K3_NS - 1):
        for g in dma_stage(None):
            for x in g:
                a(x)
    a(f"s_lshl_b32 s{sT0}, s{sWm}, 13")
    a(f"s_lshl_b32 s{sT1}, s{sKh}, 11")
    a(f"s_add_u32 s{sT0}, s{sT0}, s{sT1}")
    a(f"v_add_u32 v{vXb}, s{sT0}, v{vL16}")
    a(f"v_bfe_u32 v{vT}, v{vLane}, 2, 2")
    a(f"v_lshrrev_b32 v{vT+1}, 5, v{vLane}")
    a(f"v_lshl_add_u32 v{vT+2}, v{vT+1}, 2, v{vT}")
    a(f"v_lshlrev_b32 v{vWb}, 7, v{vT+2}")
    a(f"v_and_b32 v{vT+2}, 1, v{vLane}")
    a(f"v_lshlrev_b32 v{vT+2}, 1, v{vT+2}")
    a(f"v_bfe_u32 v{vT+3}, v{vLane}, 4, 1")
    a(f"v_add_u32 v{vT+2}, v{vT+2}, v{vT+3}")
    a(f"v_lshrrev_b32 v{vT+3}, 1, v{vT}")
    a(f"v_lshlrev_b32 v{vT+3}, 2, v{vT+3}")
    a(f"v_xor_b32 v{vT+2}, v{vT+2}, v{vT+3}")
    a(f"v_lshl_add_u32 v{vWb}, v{vT+2}, 4, v{vWb}")
    a(f"v_bfe_u32 v{vT+2}, v{vLane}, 1, 1")
    a(f"v_lshl_add_u32 v{vWb}, v{vT+2}, 3, v{vWb}")
    a(f"s_lshl_b32 s{sT0}, s{sWn}, 13")
    a(f"s_lshl_b32 s{sT1}, s{sKh}, 12")
    a(f"s_add_u32 s{sT0}, s{sT0}, s{sT1}")
    a(f"s_add_u32 s{sT0}, s{sT0}, 16384")
    a(f"v_add_u32 v{vWb}, s{sT0}, v{vWb}")
    vWr2 = vT + 4
    for i in range(64):
        a(f"v_mov_b32 v{ACC+i}, 0")
    a(f"s_mov_b32 s{sRd}, 0")
    a(f"v_mov_b32 v{vXr}, v{vXb}")
    a(f"v_mov_b32 v{vWr}, v{vWb}")
    a(f"v_xor_b32 v{vWr2}, 64, v{vWb}")

    def reads(st, tp):
        r = []
        r.append(f"ds_read_b128 {vr(xf(st,0),4)}, v{vXr} offset:{tp*1024}")
        for t4 in range(2):
            r.append(f"ds_read_b64_tr_b16 {vr(wf(st,0)+2*t4,2)}, v{vWr} offset:{tp*2048+t4*1024}")
        r.append(f"ds_read_b128 {vr(xf(st,1),4)}, v{vXr} offset:{4096+tp*1024}")
        for t4 in range(2):
            r.append(f"ds_read_b64_tr_b16 {vr(wf(st,1)+2*t4,2)}, v{vWr2} offset:{tp*2048+t4*1024}")
        return r

    def mf(st):
        return [f"v_mfma_f32_32x32x16_bf16 {vr(acc(ct,tt),16)}, {vr(wf(st,ct),4)}, {vr(xf(st,tt),4)}, {vr(acc(ct,tt),16)}"
                for ct in range(2) for tt in range(2)]
    stamp(a, 1)
    a(f"s_waitcnt vmcnt({4*(K3_NS-2)})")
    a("s_barrier")
    stamp(a, 2)
    for r in reads(0, 0):
        a(r)
    sJ = 38
    a(f"s_mov_b32 s{sJ}, 0")
    a(".p2align 6")
    a.label("K3_LOOP")
    m = mf(0); r = reads(1, 1)
    a("s_waitcnt lgkmcnt(0)")
    a(m[0]); a(r[0]); a(r[1]); a(r[2])
    a(m[1]); a(r[3]); a(r[4]); a(r[5])
    a(m[2])
    a(f"s_add_u32 s{sRd}, s{sRd}, 32768")
    a(f"s_cmp_eq_u32 s{sRd}, {K3_NS*32768}")
    a(f"s_cselect_b32 s{sRd}, 0, s{sRd}")
    a(m[3])
    a(f"v_add_u32 v{vXr}, s{sRd}, v{vXb}")
    a(f"v_add_u32 v{vWr}, s{sRd}, v{vWb}")
    a(f"v_xor_b32 v{vWr2}, 64, v{vWr}")
    m = mf(1); r = reads(0, 0)
    a(f"s_waitcnt vmcnt({4*(K3_NS-3)}) lgkmcnt(0)")
    a("s_barrier")
    g = dma_stage(None)
    a(m[0]); a(r[0]); a(r[1]); a(r[2])
    a(m[1]); a(r[3]); a(r[4]); a(r[5])
    a(m[2])
    for x in g[0] + g[1]:
        a(x)
    a(m[3])
    for x in g[2] + g[3] + g[4]:
        a(x)
    a(f"s_add_u32 s{sJ}, s{sJ}, 1")
    a(f"s_cmp_lt_u32 s{sJ}, 16")
    a("s_cbranch_scc1 K3_LOOP")
    stamp(a, 3)
    a("s_waitcnt vmcnt(0) lgkmcnt(0)")
    a("s_barrier")
    a(f"s_and_b32 s{sT0}, s{sWave}, 3")
    a(f"s_lshl_b32 s{sT0}, s{sT0}, 14")
    a(f"s_lshl_b32 s{sT1}, s{sKh}, 13")
    a(f"s_add_u32 s{sT2}, s{sT0}, s{sT1}")
    a(f"v_add_u32 v{vT}, s{sT2}, v{vL16}")
    a(f"s_xor_b32 s{sT2}, s{sT2}, 8192")
    a(f"v_add_u32 v{vT+1}, s{sT2}, v{vL16}")
    a(f"s_cmp_eq_u32 s{sKh}, 0")
    a("s_cbranch_scc1 K3_KH0")
    for i in range(8):
        a(f"ds_write_b128 v{vT}, {vr(ACC+4*i,4)} offset:{i*1024}")
    for i in range(32):
        a(f"v_mov_b32 v{ACC+i}, v{ACC+32+i}")
    a("s_branch K3_X")
    a.label("K3_KH0")
    for i in range(8):
        a(f"ds_write_b128 v{vT}, {vr(ACC+32+4*i,4)} offset:{i*1024}")
    a.label("K3_X")
    a("s_waitcnt lgkmcnt(0)")
    a("s_barrier")
    for i in range(8):
        a(f"ds_read_b128 {vr(ACC+32+4*i,4)}, v{vT+1} offset:{i*1024}")
    a(f"v_and_b32 v{vT+2}, 31, v{vLane}")
    a(f"v_lshlrev_b32 v{vT+2}, 12, v{vT+2}")
    a(f"v_lshrrev_b32 v{vT+3}, 5, v{vLane}")
    a(f"v_lshl_add_u32 v{vT+2}, v{vT+3}, 5, v{vT+2}")
    a(f"s_lshl_b32 s{sT0}, s{sMb}, 19")
    a(f"s_lshl_b32 s{sT1}, s{sWm}, 18")
    a(f"s_add_u32 s{sT0}, s{sT0}, s{sT1}")
    a(f"s_lshl_b32 s{sT1}, s{sProb}, 11")
    a(f"s_add_u32 s{sT0}, s{sT0}, s{sT1}")
    a(f"s_lshl_b32 s{sT1}, s{sNb}, 8")
    a(f"s_add_u32 s{sT0}, s{sT0}, s{sT1}")
    a(f"s_lshl_b32 s{sT1}, s{sWn}, 7")
    a(f"s_add_u32 s{sT0}, s{sT0}, s{sT1}")
    a(f"s_lshl_b32 s{sT1}, s{sKh}, 6")
    a(f"s_add_u32 s{sT0}, s{sT0}, s{sT1}")
    a(f"s_add_u32 s{sT1}, s{sT0}, 131072")
    a("s_waitcnt lgkmcnt(0)")
    for i in range(32):
        a(f"v_add_f32 v{ACC+i}, v{ACC+i}, v{ACC+32+i}")
    for i in range(16):
        a(f"v_cvt_pk_bf16_f32 v{FR+i}, v{ACC+2*i}, v{ACC+2*i+1}")
    for tt in range(2):
        so = sT0 if tt == 0 else sT1
        a(f"buffer_store_dwordx4 {vr(FR+tt*8,4)}, v{vT+2}, s[{SO}:{SO+3}], s{so} offen")
        a(f"buffer_store_dwordx4 {vr(FR+tt*8+4,4)}, v{vT+2}, s[{SO}:{SO+3}], s{so} offen offset:16")
    if STAMP:
        stamp(a, 4)
        a("s_waitcnt vmcnt(0)")
        stamp(a, 5); stamp(a, 7, True)
        stamp_store(a, sWave, 2, 16)
    a.label("K3_END")
    a("s_endpgm")
    kernel_desc(a, name, 112)
    return name, (256, 1, 1), (512, 1, 1), K3_LDS


HEADER = open("cdna_kernels/" + NAME + ".s.ref").read().split("; Override launch")[0]


def build(kernels=("k1", "k2", "k3")):
    a = Asm()
    launches = []
    gens = {"k1": gen_k1, "k2": gen_k2, "k3": gen_k3}
    for k in kernels:
        launches.append(gens[k](a))
    hdr = HEADER
    for (n, g, b, l) in launches:
        hdr += f"; @launch kernel={n} grid=({g[0]},{g[1]},{g[2]}) block=({b[0]},{b[1]},{b[2]}) lds={l}\n"
    hdr += '.amdgcn_target "amdgcn-amd-amdhsa--gfx950"\n'
    return hdr + a.text()


if __name__ == "__main__":
    out = sys.argv[1] if len(sys.argv) > 1 else "cdna_kernels/" + NAME + ".s"
    open(out, "w").write(build())
    print("wrote", out)
```
